```python
import torch

def _softmax(x, axis=-1):
    return torch.softmax(x, dim=axis)
def _gelu(x):
    return torch.nn.functional.gelu(x, approximate="tanh")
def _silu(x):
    return torch.nn.functional.silu(x)
def _sigmoid(x):
    return torch.sigmoid(x)
def _layernorm(x, axis=-1, eps=1e-5):
    m = x.mean(dim=axis, keepdim=True)
    v = x.var(dim=axis, keepdim=True, unbiased=False)
    return (x - m) / torch.sqrt(v + eps)
def _scatter_add(tgt, idx, src, axis=0):
    return tgt.clone().index_add_(axis, idx, src)
def _segment_sum(src, seg, n):
    out = torch.zeros((n,) + src.shape[1:], dtype=src.dtype)
    return out.index_add_(0, seg, src)
def _pad(x, pw):
    flat = tuple(v for pair in reversed(pw) for v in pair)
    return torch.nn.functional.pad(x, flat)

kernel_name = 'gated_mix__ssm_conv_s5__dense_activation_mish__prompt'

def setup_inputs():

    _w = (lambda a: (lambda t: t.to(torch.bfloat16) if t.is_floating_point() else t)(torch.as_tensor(a)))
    def _A_setup():
        B, S, D = 1, 2048, 512
        P = D
        Lambda_re = -0.5 * (lambda _x: torch.exp(torch.as_tensor(_x)))((lambda *s: torch.randn(*s, dtype=torch.bfloat16) * 0.2)(P))
        Lambda_im = (lambda *s: torch.randn(*s, dtype=torch.bfloat16) * 0.2)(P) * 1.0
        B_re = (lambda *s: torch.randn(*s, dtype=torch.bfloat16) * 0.2)(P, D) * (D ** -0.5)
        B_im = (lambda *s: torch.randn(*s, dtype=torch.bfloat16) * 0.2)(P, D) * (D ** -0.5)
        C_re = (lambda *s: torch.randn(*s, dtype=torch.bfloat16) * 0.2)(D, P) * (P ** -0.5)
        C_im = (lambda *s: torch.randn(*s, dtype=torch.bfloat16) * 0.2)(D, P) * (P ** -0.5)
        log_dt = (lambda *s: torch.randn(*s, dtype=torch.bfloat16) * 0.2)(P) * 0.3 - 2.0
        Dskip = (lambda *s: torch.randn(*s, dtype=torch.bfloat16) * 0.05)(D)
        return {
            "x": _w((lambda *s: torch.randn(*s, dtype=torch.bfloat16) * 0.05)(B, S, D)),
            "Lambda_re": _w(Lambda_re),
            "Lambda_im": _w(Lambda_im),
            "B_re": _w(B_re),
            "B_im": _w(B_im),
            "C_re": _w(C_re),
            "C_im": _w(C_im),
            "log_dt": _w(log_dt),
            "Dskip": _w(Dskip),
        }
    _A_in = _A_setup()

    def _B_setup():
        B, S, D, F = 1, 2048, 512, 1792
        return {
            "x": _w((lambda *s: torch.randn(*s, dtype=torch.bfloat16) * 0.05)(B, S, D)),
            "w1": _w((lambda *s: torch.randn(*s, dtype=torch.bfloat16) * 3.2)(D, F) * (D ** -0.5)),
            "b1": _w((lambda *s: torch.randn(*s, dtype=torch.bfloat16) * 0.05)(F)),
            "w2": _w((lambda *s: torch.randn(*s, dtype=torch.bfloat16) * 0.05)(F, D) * (F ** -0.5)),
        }
    _B_in = _B_setup()

    return {
        "A_x": _A_in["x"],
        "A_Lambda_re": _A_in["Lambda_re"],
        "A_Lambda_im": _A_in["Lambda_im"],
        "A_B_re": _A_in["B_re"],
        "A_B_im": _A_in["B_im"],
        "A_C_re": _A_in["C_re"],
        "A_C_im": _A_in["C_im"],
        "A_log_dt": _A_in["log_dt"],
        "A_Dskip": _A_in["Dskip"],
        "B_x": _B_in["x"],
        "B_w1": _B_in["w1"],
        "B_b1": _B_in["b1"],
        "B_w2": _B_in["w2"],
        "gate_w": _w((lambda *s: torch.randn(*s, dtype=torch.bfloat16) * 0.05)(512) * 16.0),
    }

def reference(A_x, A_Lambda_re, A_Lambda_im, A_B_re, A_B_im, A_C_re, A_C_im, A_log_dt, A_Dskip, B_x, B_w1, B_b1, B_w2, gate_w):
    def _A_ref(x, Lambda_re, Lambda_im, B_re, B_im, C_re, C_im, log_dt, Dskip):
        Bsz, L, H = x.shape
        Lam = Lambda_re + 1j * Lambda_im
        Bmat = B_re + 1j * B_im
        Cmat = C_re + 1j * C_im
        dt = torch.exp(log_dt)
        Lam_bar = torch.exp(dt * Lam)
        B_bar = ((Lam_bar - 1.0) / Lam)[:, None] * Bmat
        Bu = torch.einsum("bld,pd->blp", x + 0j, B_bar)
        h = torch.zeros_like(Bu[:, 0, :])
        hs = []
        for t in range(L):
            h = Lam_bar[None, :] * h + Bu[:, t, :]
            hs.append(h)
        hseq = torch.stack(hs, 1)
        y = 2.0 * torch.einsum("blp,dp->bld", hseq, Cmat).real + x * Dskip[None, None, :]
        return y

    def _B_ref(x, w1, b1, w2):
        h = torch.einsum("bsd,df->bsf", x, w1) + b1
        sp = torch.log1p(torch.exp(-torch.abs(h))) + torch.where(h > 0, h, torch.zeros_like(h))
        act = h * torch.tanh(sp)
        return torch.einsum("bsf,fd->bsd", act, w2)

    x = A_x
    g = _sigmoid((x * gate_w).sum(-1, keepdims=True))
    a = _A_ref(x, A_Lambda_re, A_Lambda_im, A_B_re, A_B_im, A_C_re, A_C_im, A_log_dt, A_Dskip)
    b = _B_ref(x, B_w1, B_b1, B_w2)
    return g * a + (1 - g) * b
```

```python
class Asm:
    def __init__(self):
        self.L = []
        self.uid = 0
    def __call__(self, s):
        for line in s.split("\n"):
            line = line.strip()
            if line: self.L.append(line)
    def label(self, name): self.L.append(name + ":")
    def newlabel(self, base):
        self.uid += 1
        return f"L_{base}_{self.uid}"
    def text(self):
        out = []
        for l in self.L:
            out.append(l if l.endswith(":") or l.startswith(".") or l.startswith(";") else "    " + l)
        return "\n".join(out) + "\n"

def vr(b, n=1): return f"v{b}" if n == 1 else f"v[{b}:{b+n-1}]"
def sr(b, n=1): return f"s{b}" if n == 1 else f"s[{b}:{b+n-1}]"

def srd(a, dst, ptr, nbytes):
    a(f"s_mov_b32 s{dst}, s{ptr}")
    a(f"s_and_b32 s{dst+1}, s{ptr+1}, 0xffff")
    a(f"s_mov_b32 s{dst+2}, {nbytes}")
    a(f"s_mov_b32 s{dst+3}, 0x20000")
```

```python
import sys
from asmlib import *

NAME = "gated_mix__ssm_conv_s5__dense_activation_mish__prompt"
AH_OFF = 0
WB_OFF = 0xB00000
G_OFF  = 0xE00000
S_OFF  = 0xE10000
PROF_OFF = 0xF00000
WS_BYTES = 0x1000000
KS = 176
LOG2E = 0x3fb8aa3b
INV2PI = 0x3e22f983

PROFILE = False

class Prof:
    def __init__(self, a, base=70): self.a, self.base, self.n = a, base, 0
    def stamp(self, idx):
        if PROFILE:
            self.a(f"s_memtime s[{self.base+2*idx}:{self.base+2*idx+1}]")
    def flush(self, kidx, nst, s_id, s_wave, ws_srd, vtmp, vlane):
        if not PROFILE: return
        a = self.a
        a(f"s_memrealtime s[{self.base+2*nst}:{self.base+2*nst+1}]")
        a("s_waitcnt lgkmcnt(0)")
        a(f"s_lshl_b32 s68, s{s_id}, 3\ns_add_u32 s68, s68, s{s_wave}\ns_lshl_b32 s68, s68, 6\ns_add_u32 s68, s68, {PROF_OFF + kidx*0x20000}")
        a(f"v_mov_b32 v{vtmp}, 0")
        for i in range(nst+1):
            a(f"v_mov_b32 v{vtmp+1}, s{self.base+2*i}")
            a(f"v_cmp_eq_u32 vcc, {i}, v{vlane}\ns_nop 1\nv_cndmask_b32 v{vtmp}, v{vtmp}, v{vtmp+1}, vcc")
        a(f"v_lshlrev_b32 v{vtmp+1}, 2, v{vlane}")
        a(f"v_cmp_gt_u32 vcc, 16, v{vlane}\ns_and_saveexec_b64 s[66:67], vcc")
        a(f"buffer_store_dword v{vtmp}, v{vtmp+1}, s[{ws_srd}:{ws_srd+3}], s68 offen")
        a("s_mov_b64 exec, s[66:67]")

def decode_ids(a, s_r, s_c, s_wave, s_t):
    a(f"""
    s_and_b32 s{s_t}, s2, 7
    s_lshr_b32 s{s_t+1}, s2, 3
    s_lshr_b32 s{s_r}, s{s_t}, 1
    s_lshl_b32 s{s_r}, s{s_r}, 2
    s_lshr_b32 s{s_c}, s{s_t+1}, 3
    s_add_u32 s{s_r}, s{s_r}, s{s_c}
    s_and_b32 s{s_c}, s{s_t}, 1
    s_lshl_b32 s{s_c}, s{s_c}, 3
    s_and_b32 s{s_t+1}, s{s_t+1}, 7
    s_add_u32 s{s_c}, s{s_c}, s{s_t+1}
    v_lshrrev_b32 v1, 6, v0
    v_and_b32 v0, 63, v0
    v_readfirstlane_b32 s{s_wave}, v1
    """)

def gen_k2(a, kname):
    NS = 8
    NCH = 44
    P = Prof(a)
    a(f".p2align 8\n.type {kname},@function\n{kname}:")
    a("s_cmp_ge_u32 s2, 256\ns_cbranch_scc1 K2_end")
    P.stamp(0)
    a("s_load_dwordx2 s[4:5], s[0:1], 0      ; x")
    a("s_load_dwordx2 s[6:7], s[0:1], 64     ; Dskip")
    a("s_load_dwordx2 s[8:9], s[0:1], 112    ; out")
    a("s_load_dwordx2 s[10:11], s[0:1], 128  ; ws")
    R, C, W, T = 28, 29, 30, 31
    decode_ids(a, R, C, W, T)
    a("s_waitcnt lgkmcnt(0)")
    srd(a, 12, 10, WS_BYTES)
    a(f"s_and_b32 s33, s{C}, 1\ns_lshl_b32 s{T}, s{R}, 1\ns_add_u32 s33, s33, s{T}\ns_lshr_b32 s34, s{C}, 1")
    a(f"s_cmp_ge_u32 s{W}, 4\ns_cbranch_scc0 K2_consumer")
    a(f"s_sub_u32 s35, s{W}, 4              ; lw")
    a("s_and_b32 s36, s35, 1")
    a("s_cmp_ge_u32 s35, 2")
    a("s_cselect_b32 s37, s34, s33")
    a(f"s_cselect_b32 s38, {WB_OFF}, {AH_OFF}")
    a("s_lshl_b32 s37, s37, 1\ns_add_u32 s37, s37, s36")
    a(f"s_mul_i32 s37, s37, {KS*1024}\ns_add_u32 s37, s37, s38   ; soffset")
    a("s_lshl_b32 s39, s35, 12")
    a("v_lshlrev_b32 v1, 4, v0")
    def issue():
        a("s_mov_b32 m0, s39")
        a(f"s_add_u32 s39, s39, 16384\ns_and_b32 s39, s39, {NS*16384-1}")
        for j in range(4):
            a(f"buffer_load_dwordx4 v1, s[12:15], s37 offen offset:{1024*j} lds")
        a("s_add_u32 s37, s37, 4096")
    for k in range(NS): issue()
    P.stamp(1)
    a(f"s_waitcnt vmcnt({4*(NS-1)})\ns_barrier")
    P.stamp(2)
    a(f"s_mov_b32 s40, {NCH-NS}")
    a("K2_lloop:")
    a(f"s_waitcnt vmcnt({4*(NS-2)})\ns_barrier")
    issue()
    a("s_sub_u32 s40, s40, 1\ns_cmp_lg_u32 s40, 0\ns_cbranch_scc1 K2_lloop")
    for k in range(NCH-NS+1, NCH):
        a(f"s_waitcnt vmcnt({4*(NCH-1-k)})\ns_barrier")
    P.stamp(3)
    a(f"v_mov_b32 v2, v0")
    P.flush(1, 4, 2, W, 12, 4, 2)
    a("s_endpgm")
    a("K2_consumer:")
    srd(a, 16, 8, 2048*512*4)
    srd(a, 20, 4, 2048*512*2)
    srd(a, 24, 6, 1024)
    VA, VB = 2, 3
    ACCA, ACCB = 16, 32
    F0, F1 = 48, 80
    VG, VX, VD = 112, 128, 144
    VO = 145
    a(f"s_lshr_b32 s35, s{W}, 1              ; a\ns_and_b32 s36, s{W}, 1              ; b")
    a(f"v_lshlrev_b32 v1, 4, v0")
    a(f"s_lshl_b32 s37, s35, 12\nv_add_u32 v{VA}, s37, v1")
    a(f"s_lshl_b32 s37, s36, 12\ns_add_u32 s37, s37, 8192\nv_add_u32 v{VB}, s37, v1")
    a("s_lshl_b32 s38, s33, 6\ns_lshl_b32 s37, s35, 5\ns_add_u32 s38, s38, s37      ; row0")
    a("s_lshl_b32 s39, s34, 6\ns_lshl_b32 s37, s36, 5\ns_add_u32 s39, s39, s37      ; d0")
    a("v_and_b32 v4, 31, v0\nv_lshrrev_b32 v5, 5, v0      ; n, hh")
    a("v_add_u32 v4, s39, v4                 ; d")
    a("v_lshlrev_b32 v5, 3, v5\nv_add_u32 v5, s38, v5      ; row0+8hh")
    a(f"v_lshlrev_b32 v6, 2, v5\ns_mov_b32 s40, {G_OFF}")
    for q in range(4):
        a(f"buffer_load_dwordx4 {vr(VG+4*q,4)}, v6, s[12:15], s40 offen offset:{(16*(q&1)+4*(q>>1))*4}")
    a(f"v_lshlrev_b32 v6, 10, v5\nv_lshlrev_b32 v7, 1, v4\nv_add_u32 v6, v6, v7")
    for q in range(4):
        a(f"s_mov_b32 s41, {(16*(q&1)+4*(q>>1))*1024}")
        for r in range(4):
            a(f"buffer_load_ushort v{VX+4*q+r}, v6, s[20:23], s41 offen offset:{r*1024}")
    a(f"buffer_load_ushort v{VD}, v7, s[24:27], 0 offen")
    a(f"v_lshlrev_b32 v{VO}, 11, v5\nv_lshlrev_b32 v7, 2, v4\nv_add_u32 v{VO}, v{VO}, v7")
    for i in range(32): a(f"v_mov_b32 v{ACCA+i}, 0")
    P.stamp(1)
    def reads(fs):
        for kk in range(4):
            a(f"ds_read_b128 {vr(fs+4*kk,4)}, v{VA} offset:{1024*kk}")
            a(f"ds_read_b128 {vr(fs+16+4*kk,4)}, v{VB} offset:{1024*kk}")
    def adv():
        a(f"v_add_u32 v{VA}, 16384, v{VA}\nv_add_u32 v{VB}, 16384, v{VB}")
        a(f"v_and_b32 v{VA}, {NS*16384-1}, v{VA}\nv_and_b32 v{VB}, {NS*16384-1}, v{VB}")
    def mfmas(fs, acc):
        for kk in range(4):
            a(f"v_mfma_f32_32x32x16_bf16 {vr(acc,16)}, {vr(fs+4*kk,4)}, {vr(fs+16+4*kk,4)}, {vr(acc,16)}")
    def step(cur, nxt, acc):
        a("s_waitcnt lgkmcnt(0)\ns_barrier")
        adv(); reads(nxt); mfmas(cur, acc)
    a("s_barrier")
    P.stamp(2)
    reads(F0)
    a("s_mov_b32 s40, 8")
    a("K2_loopA:")
    step(F0, F1, ACCA); step(F1, F0, ACCA)
    a("s_sub_u32 s40, s40, 1\ns_cmp_lg_u32 s40, 0\ns_cbranch_scc1 K2_loopA")
    a("s_mov_b32 s40, 13")
    a("K2_loopB:")
    step(F0, F1, ACCB); step(F1, F0, ACCB)
    a("s_sub_u32 s40, s40, 1\ns_cmp_lg_u32 s40, 0\ns_cbranch_scc1 K2_loopB")
    step(F0, F1, ACCB)
    a("s_waitcnt lgkmcnt(0)")
    mfmas(F1, ACCB)
    P.stamp(3)
    a("s_waitcnt vmcnt(0)")
    a(f"v_lshlrev_b32 v{VD}, 16, v{VD}")
    for i in range(16): a(f"v_lshlrev_b32 v{VX+i}, 16, v{VX+i}")
    a("s_nop 7")
    for r in range(16):
        a(f"v_fma_f32 v{ACCA+r}, v{VX+r}, v{VD}, v{ACCA+r}")
        a(f"v_sub_f32 v{ACCA+r}, v{ACCA+r}, v{ACCB+r}")
        a(f"v_fma_f32 v{ACCA+r}, v{VG+r}, v{ACCA+r}, v{ACCB+r}")
    for r in range(16):
        t = 16*((r >> 2) & 1) + 4*(r >> 3) + (r & 3)
        if (r & 1) == 0: a(f"s_mov_b32 s41, {t*2048}")
        a(f"buffer_store_dword v{ACCA+r}, v{VO}, s[16:19], s41 offen offset:{(r&1)*2048}")
    P.stamp(4)
    P.flush(1, 5, 2, W, 12, 4, 0)
    a("K2_end:\ns_endpgm")
    return dict(vgpr=146+2, sgpr=96)


XB, BB, WBASE = 0, 49152, 73728
EXT = 122880
E_LDS   = EXT
HIN_LDS = EXT + 4096
COEF_LDS = EXT + 8192
W2_LDS  = EXT + 8704
TR_STRIDE = 72
TR_WAVE = 4*16*TR_STRIDE

def param_compute(a, vLre, vLim, vldt, vlr, vli, t0, want_coef=None):
    t = t0
    a(f"""
    v_lshlrev_b32 v{vLre}, 16, v{vLre}
    v_lshlrev_b32 v{vLim}, 16, v{vLim}
    v_lshlrev_b32 v{vldt}, 16, v{vldt}
    v_mul_f32 v{t}, {LOG2E}, v{vldt}
    v_exp_f32 v{t}, v{t}
    s_nop 1
    v_cvt_pk_bf16_f32 v{t}, v{t}, v{t}
    v_lshlrev_b32 v{t}, 16, v{t}
    v_mul_f32 v{t+1}, v{t}, v{vLre}
    v_mul_f32 v{t+2}, v{t}, v{vLim}
    v_mul_f32 v{t+1}, {LOG2E}, v{t+1}
    v_exp_f32 v{t+1}, v{t+1}
    v_mul_f32 v{t+2}, {INV2PI}, v{t+2}
    v_rndne_f32 v{t+3}, v{t+2}
    v_sub_f32 v{t+2}, v{t+2}, v{t+3}
    v_cos_f32 v{t+3}, v{t+2}
    v_sin_f32 v{t+4}, v{t+2}
    s_nop 1
    v_mul_f32 v{vlr}, v{t+1}, v{t+3}
    v_mul_f32 v{vli}, v{t+1}, v{t+4}
    """)
    if want_coef:
        cr, ci = want_coef
        a(f"""
        v_add_f32 v{t}, -1.0, v{vlr}
        v_mul_f32 v{t+1}, v{vLre}, v{vLre}
        v_fma_f32 v{t+1}, v{vLim}, v{vLim}, v{t+1}
        v_rcp_f32 v{t+1}, v{t+1}
        v_mul_f32 v{t+2}, v{t}, v{vLre}
        v_fma_f32 v{t+2}, v{vli}, v{vLim}, v{t+2}
        v_mul_f32 v{t+3}, v{vli}, v{vLre}
        v_fma_f32 v{t+3}, -v{t}, v{vLim}, v{t+3}
        v_mul_f32 v{cr}, v{t+2}, v{t+1}
        v_mul_f32 v{ci}, v{t+3}, v{t+1}
        """)

def csquare(a, dr, di, sr_, si, t):
    a(f"""
    v_mul_f32 v{t}, v{si}, v{si}
    v_mul_f32 v{t+1}, v{sr_}, v{si}
    v_fma_f32 v{dr}, v{sr_}, v{sr_}, -v{t}
    v_add_f32 v{di}, v{t+1}, v{t+1}
    """)

def cfma_new(a, nr, ni, lr, li, hr, hi, br, bi):
    a(f"v_fma_f32 v{nr}, v{lr}, v{hr}, v{br}")
    a(f"v_fma_f32 v{ni}, v{lr}, v{hi}, v{bi}")
    a(f"v_fma_f32 v{nr}, -v{li}, v{hi}, v{nr}")
    a(f"v_fma_f32 v{ni}, v{li}, v{hr}, v{ni}")

def gen_k1(a, kname):
    P = Prof(a)
    a(f".p2align 8\n.type {kname},@function\n{kname}:")
    a("s_cmp_ge_u32 s2, 256\ns_cbranch_scc1 K1_end")
    P.stamp(0)
    a("s_load_dwordx4 s[4:7], s[0:1], 0       ; x, Lre")
    a("s_load_dwordx4 s[8:11], s[0:1], 16")
    a("s_load_dwordx4 s[12:15], s[0:1], 32")
    a("s_load_dwordx4 s[16:19], s[0:1], 48")
    a("s_load_dwordx4 s[20:23], s[0:1], 80    ; w1, b1")
    a("s_load_dwordx4 s[24:27], s[0:1], 96    ; w2, gate_w")
    a("s_load_dwordx4 s[28:31], s[0:1], 120")
    R, C, W, T = 32, 33, 34, 35
    decode_ids(a, R, C, W, T)
    a("s_waitcnt lgkmcnt(0)")
    WS = 40
    srd(a, WS, 30, WS_BYTES)
    a(f"s_cmp_ge_u32 s{W}, 4\ns_cbranch_scc0 K1_consumer")
    SX, SB, SW, SP = 44, 48, 52, 56
    LW = 37
    a(f"s_sub_u32 s{LW}, s{W}, 4")
    srd(a, SX, 4, 2048*512*2)
    a(f"s_cmp_ge_u32 s{LW}, 2\ns_cselect_b32 s38, s12, s10\ns_cselect_b32 s39, s13, s11")
    srd(a, SB, 38, 512*512*2)
    srd(a, SW, 20, 512*1792*2)
    vLre, vLim, vldt = 40, 41, 42
    a(f"v_and_b32 v2, 31, v0\ns_lshl_b32 s38, s{C}, 5\nv_add_u32 v2, s38, v2\nv_lshlrev_b32 v2, 1, v2")
    srd(a, SP, 6, 1024);  a(f"buffer_load_ushort v{vLre}, v2, s[{SP}:{SP+3}], 0 offen")
    srd(a, SP, 8, 1024);  a(f"buffer_load_ushort v{vLim}, v2, s[{SP}:{SP+3}], 0 offen")
    srd(a, SP, 18, 1024); a(f"buffer_load_ushort v{vldt}, v2, s[{SP}:{SP+3}], 0 offen")
    VGW = 64
    srd(a, SP, 26, 1024)
    a("v_and_b32 v3, 7, v0\nv_lshlrev_b32 v3, 4, v3")
    for i in range(8):
        a(f"buffer_load_dwordx4 {vr(VGW+4*i,4)}, v3, s[{SP}:{SP+3}], 0 offen offset:{128*i}")
    VDX, VDB, VDW = 4, 8, 124
    a("v_lshrrev_b32 v12, 3, v0              ; l>>3")
    a("v_and_b32 v13, 7, v0                  ; l&7")
    a("v_lshrrev_b32 v14, 4, v0              ; l>>4")
    a(f"s_lshl_b32 s38, s{LW}, 5             ; 32*lw")
    for j in range(4):
        a(f"v_and_b32 v15, 1, v14\nv_or_b32 v15, {j<<1}, v15\nv_xor_b32 v15, v13, v15\nv_lshlrev_b32 v15, 4, v15")
        a(f"v_add_u32 v16, s38, v12\nv_add_u32 v16, {8*j}, v16\nv_lshlrev_b32 v16, 10, v16")
        a(f"v_add_u32 v16, v16, v15\nv_subrev_u32 v{VDX+j}, {1024*j}, v16")
    a(f"s_and_b32 s38, s{LW}, 1\ns_lshl_b32 s38, s38, 4       ; 16*(lw&1)")
    for j in range(2):
        a(f"v_add_u32 v15, {4*j}, v14\nv_and_b32 v15, 7, v15\nv_xor_b32 v15, v13, v15\nv_lshlrev_b32 v15, 4, v15")
        a(f"v_add_u32 v16, s38, v12\nv_add_u32 v16, {8*j}, v16\nv_lshlrev_b32 v16, 10, v16")
        a(f"v_add_u32 v16, v16, v15\nv_subrev_u32 v{VDB+j}, {1024*j}, v16")
    a(f"s_lshl_b32 s38, s{LW}, 4             ; 16*lw")
    a("v_and_b32 v13, 15, v0                 ; pos")
    a("s_mov_b32 s39, 3584")
    for j in range(4):
        a(f"v_or_b32 v15, {(j>>1)<<2}, v14\nv_lshlrev_b32 v15, 1, v15\nv_xor_b32 v15, v13, v15")
        a(f"v_add_u32 v16, s38, v14\nv_add_u32 v16, {4*j}, v16\nv_mul_lo_u32 v16, v16, s39")
        a(f"v_lshlrev_b32 v17, 4, v15\nv_add_u32 v16, v16, v17\nv_subrev_u32 v16, {1024*j}, v16")
        a(f"v_mov_b32 v17, 0x7ff00000\nv_cmp_gt_u32 vcc, 14, v15\ns_nop 1\nv_cndmask_b32 v{VDW+j}, v17, v16, vcc")
    OX, OB, OW = 60, 61, 62
    a(f"s_lshl_b32 s{OX}, s{R}, 17           ; 128 r * 1024")
    a(f"s_lshl_b32 s{OB}, s{C}, 15           ; 32 c * 1024")
    a(f"s_mul_i32 s{OW}, s{C}, 224")
    a(f"s_lshl_b32 s63, s{LW}, 12            ; lw*4096")
    a(f"s_lshl_b32 s64, s{LW}, 11            ; lw*2048")
    def issue(slot):
        a(f"s_add_u32 m0, s63, {XB + slot*16384}")
        a("s_nop 0")
        for j in range(4): a(f"buffer_load_dwordx4 v{VDX+j}, s[{SX}:{SX+3}], s{OX} offen offset:{1024*j} lds")
        a(f"s_add_u32 m0, s64, {BB + slot*8192}")
        a(f"s_add_u32 s{OX}, s{OX}, 128")
        for j in range(2): a(f"buffer_load_dwordx4 v{VDB+j}, s[{SB}:{SB+3}], s{OB} offen offset:{1024*j} lds")
        a(f"s_add_u32 m0, s63, {WBASE + slot*16384}")
        a(f"s_add_u32 s{OB}, s{OB}, 128")
        for j in range(4): a(f"buffer_load_dwordx4 v{VDW+j}, s[{SW}:{SW+3}], s{OW} offen offset:{1024*j} lds")
        a(f"s_add_u32 s{OW}, s{OW}, {64*3584}")
    for k in range(3): issue(k)
    P.stamp(1)
    vlr, vli, vcr, vci, vl8r, vl8i, vl128r, vl128i = 44, 45, 46, 47, 48, 49, 50, 51
    a("s_waitcnt vmcnt(30)")
    param_compute(a, vLre, vLim, vldt, vlr, vli, 20, (vcr, vci))
    csquare(a, vl8r, vl8i, vlr, vli, 20); csquare(a, vl8r, vl8i, vl8r, vl8i, 20); csquare(a, vl8r, vl8i, vl8r, vl8i, 20)
    csquare(a, vl128r, vl128i, vl8r, vl8i, 20)
    for _ in range(3): csquare(a, vl128r, vl128i, vl128r, vl128i, 20)
    a(f"v_and_b32 v20, 31, v0\nv_lshlrev_b32 v20, 3, v20\nv_add_u32 v20, {COEF_LDS}, v20")
    a(f"ds_write_b64 v20, v[{vcr}:{vci}]")
    VGA, VGACC = 52, 53
    a(f"s_lshl_b32 s38, s{C}, 3\nv_add_u32 v21, s38, v12      ; row")
    a("v_lshrrev_b32 v22, 1, v21\nv_and_b32 v22, 1, v22\nv_lshrrev_b32 v23, 3, v21\nv_and_b32 v23, 3, v23\nv_lshlrev_b32 v23, 1, v23\nv_or_b32 v22, v22, v23")
    a("v_and_b32 v23, 7, v0\nv_xor_b32 v22, v22, v23\nv_lshlrev_b32 v22, 4, v22")
    a(f"v_lshlrev_b32 v21, 7, v21\nv_add_u32 v{VGA}, v21, v22\nv_mov_b32 v{VGACC}, 0")
    def gate(k):
        a(f"ds_read_b128 v[24:27], v{VGA} offset:{(k%3)*16384}")
        a("s_waitcnt lgkmcnt(0)")
        for e in range(4): a(f"v_dot2c_f32_bf16 v{VGACC}, v{24+e}, v{VGW+4*k+e}")
    SW2, SCR, SCI = 84, 88, 92
    srd(a, SW2, 24, 1792*512*2); srd(a, SCR, 14, 512*512*2); srd(a, SCI, 16, 512*512*2)
    VW2, VCA = 28, 29
    a("v_lshrrev_b32 v21, 2, v0\nv_lshlrev_b32 v21, 10, v21\nv_and_b32 v22, 3, v0\nv_lshlrev_b32 v22, 4, v22")
    a(f"v_add_u32 v{VW2}, v21, v22")
    a(f"s_mul_i32 s65, s{R}, {112*1024}\ns_lshl_b32 s38, s{C}, 6\ns_add_u32 s65, s65, s38\ns_lshl_b32 s38, s{LW}, 14\ns_add_u32 s65, s65, s38")
    a(f"v_and_b32 v21, 31, v0\nv_lshlrev_b32 v21, 10, v21\nv_lshrrev_b32 v22, 5, v0\nv_lshlrev_b32 v22, 4, v22\nv_add_u32 v{VCA}, v21, v22")
    a(f"s_lshl_b32 s66, s{R}, 15\ns_lshl_b32 s38, s{C}, 6\ns_add_u32 s66, s66, s38\ns_and_b32 s38, s{LW}, 1\ns_lshl_b32 s38, s38, 5\ns_add_u32 s66, s66, s38")
    a("s_waitcnt vmcnt(20) lgkmcnt(0)\ns_barrier")
    P.stamp(2)
    VCRE, VCIM = 32, 36
    for k in range(1, 8):
        gate(k-1)
        n = 10 if k <= 5 else (14 if k == 6 else 4)
        a(f"s_waitcnt vmcnt({n})\ns_barrier")
        if k + 2 <= 7: issue((k+2) % 3)
        if k == 5:
            a(f"s_lshl_b32 s38, s{LW}, 10\ns_add_u32 m0, s38, {W2_LDS}\ns_nop 0")
            a(f"buffer_load_dwordx4 v{VW2}, s[{SW2}:{SW2+3}], s65 offen lds")
            a(f"s_add_u32 m0, s38, {W2_LDS+4096}")
            a(f"s_add_u32 s39, s65, {4*16*1024}")
            a(f"s_cmp_eq_u32 s{LW}, 3\ns_cselect_b32 s39, 0x7ff00000, s39")
            a(f"buffer_load_dwordx4 v{VW2}, s[{SW2}:{SW2+3}], s39 offen lds")
            a(f"buffer_load_dwordx4 {vr(VCRE,4)}, v{VCA}, s[{SCR}:{SCR+3}], s66 offen")
            a(f"buffer_load_dwordx4 {vr(VCIM,4)}, v{VCA}, s[{SCI}:{SCI+3}], s66 offen")
    gate(7)
    P.stamp(3)
    a("s_waitcnt vmcnt(0)")
    a("v_lshrrev_b32 v21, 5, v0\nv_lshlrev_b32 v21, 3, v21\nv_and_b32 v22, 15, v0\nv_lshrrev_b32 v22, 2, v22\nv_add_u32 v21, v21, v22\nv_lshlrev_b32 v21, 6, v21")
    a("v_lshrrev_b32 v22, 4, v0\nv_and_b32 v22, 1, v22\nv_lshlrev_b32 v22, 5, v22\nv_add_u32 v21, v21, v22\nv_and_b32 v22, 3, v0\nv_lshlrev_b32 v22, 3, v22\nv_add_u32 v21, v21, v22")
    a(f"s_lshl_b32 s38, s{LW}, 10\ns_add_u32 s38, s38, {W2_LDS}\nv_add_u32 v21, s38, v21")
    a("ds_read_b64_tr_b16 v[56:57], v21\nds_read_b64_tr_b16 v[58:59], v21 offset:256")
    a("ds_read_b64_tr_b16 v[60:61], v21 offset:4096\nds_read_b64_tr_b16 v[62:63], v21 offset:4352")
    a(f"v_lshrrev_b32 v22, 5, v0\nv_lshlrev_b32 v22, 6, v22\ns_and_b32 s38, s{LW}, 1\ns_lshl_b32 s38, s38, 7\ns_add_u32 s38, s38, {COEF_LDS}\nv_add_u32 v22, s38, v22")
    VCF = 96
    for q in range(4): a(f"ds_read_b128 {vr(VCF+4*q,4)}, v22 offset:{16*q}")
    a("v_lshlrev_b32 v23, 4, v0              ; lane*16")
    a(f"s_mul_i32 s38, s{C}, {KS}\ns_mul_i32 s39, s{R}, 7\ns_add_u32 s38, s38, s39\ns_add_u32 s38, s38, s{LW}\ns_add_u32 s38, s38, 64\ns_lshl_b32 s38, s38, 10\ns_add_u32 s38, s38, {WB_OFF}")
    a("s_waitcnt lgkmcnt(0)")
    a(f"buffer_store_dwordx4 v[56:59], v23, s[{WS}:{WS+3}], s38 offen")
    a(f"s_add_u32 s39, s38, 4096\ns_cmp_eq_u32 s{LW}, 3\ns_cselect_b32 s39, 0x7ff00000, s39")
    a(f"buffer_store_dwordx4 v[60:63], v23, s[{WS}:{WS+3}], s39 offen")
    a(f"s_cmp_ge_u32 s{LW}, 2\ns_cselect_b64 vcc, -1, 0")
    for e in range(8):
        cr, ci = VCF + 2*e, VCF + 2*e + 1
        src_re, src_im = VCRE + e//2, VCIM + e//2
        a(f"v_mul_f32 v20, 2.0, v{cr}\nv_mul_f32 v21, -2.0, v{ci}\nv_mul_f32 v22, -2.0, v{cr}")
        a(f"v_cndmask_b32 v24, v20, v21, vcc      ; p\nv_cndmask_b32 v25, v21, v22, vcc      ; q")
        if e % 2 == 0:
            a(f"v_lshlrev_b32 v26, 16, v{src_re}\nv_lshlrev_b32 v27, 16, v{src_im}")
        else:
            a(f"v_and_b32 v26, 0xffff0000, v{src_re}\nv_and_b32 v27, 0xffff0000, v{src_im}")
        a(f"v_mul_f32 v26, v24, v26\nv_fma_f32 v{112+e}, v25, v27, v26")
    for q in range(4): a(f"v_cvt_pk_bf16_f32 v{120+q}, v{112+2*q}, v{113+2*q}")
    a(f"s_mul_i32 s38, s{R}, {KS}\ns_lshl_b32 s39, s{C}, 2\ns_add_u32 s38, s38, s39\ns_add_u32 s38, s38, s{LW}\ns_lshl_b32 s38, s38, 10\ns_add_u32 s38, s38, {WB_OFF}")
    a(f"buffer_store_dwordx4 v[120:123], v23, s[{WS}:{WS+3}], s38 offen")
    a(f"s_cmp_eq_u32 s{LW}, 0\ns_cbranch_scc0 K1_nogate")
    a(f"s_nop 1\nv_add_f32_dpp v20, v{VGACC}, v{VGACC} quad_perm:[1,0,3,2] row_mask:0xf bank_mask:0xf")
    a("s_nop 1\nv_add_f32_dpp v21, v20, v20 quad_perm:[2,3,0,1] row_mask:0xf bank_mask:0xf")
    a("s_nop 1\nv_add_f32_dpp v20, v21, v21 row_half_mirror row_mask:0xf bank_mask:0xf")
    a(f"v_mul_f32 v20, {LOG2E ^ 0x80000000}, v20\nv_exp_f32 v20, v20\ns_nop 0\nv_add_f32 v20, 1.0, v20\nv_rcp_f32 v20, v20")
    a(f"s_lshl_b32 s38, s{R}, 7\ns_lshl_b32 s39, s{C}, 3\ns_add_u32 s38, s38, s39\ns_lshl_b32 s38, s38, 2\ns_add_u32 s38, s38, {G_OFF}")
    a("v_lshrrev_b32 v21, 3, v0\nv_lshlrev_b32 v21, 2, v21\nv_and_b32 v22, 7, v0\nv_cmp_eq_u32 vcc, 0, v22\ns_and_saveexec_b64 s[66:67], vcc")
    a(f"buffer_store_dword v20, v21, s[{WS}:{WS+3}], s38 offen")
    a("s_mov_b64 exec, s[66:67]")
    a("K1_nogate:")
    a("s_barrier                              ; B_E")
    P.stamp(4)
    a(f"s_cmp_eq_u32 s{LW}, 1\ns_cbranch_scc0 K1_nohelper")
    VE = 128
    a(f"v_and_b32 v20, 31, v0\nv_lshlrev_b32 v20, 3, v20\nv_add_u32 v21, {E_LDS}, v20")
    for s in range(16): a(f"ds_read_b64 {vr(VE+2*s,2)}, v21 offset:{256*s}")
    a("s_waitcnt lgkmcnt(0)")
    cur, nxt = (22, 23), (24, 25)
    a(f"v_mov_b32 v22, v{VE}\nv_mov_b32 v23, v{VE+1}")
    for s in range(1, 16):
        cfma_new(a, nxt[0], nxt[1], vl8r, vl8i, cur[0], cur[1], VE+2*s, VE+2*s+1)
        cur, nxt = nxt, cur
    assert cur == (24, 25)
    a(f"s_lshl_b32 s38, s{R}, 12\ns_lshl_b32 s39, s{C}, 8\ns_add_u32 s38, s38, s39\ns_add_u32 s38, s38, {S_OFF}")
    a(f"buffer_store_dwordx2 v[24:25], v20, s[{WS}:{WS+3}], s38 offen sc1")
    a("s_waitcnt vmcnt(0)")
    DB = 56
    srd(a, DB, 28, 256)
    a(f"s_lshl_b32 s39, 1, s{R}\nv_mov_b32 v26, s39\ns_lshl_b32 s38, s{C}, 2\nv_mov_b32 v27, s38")
    a("v_cmp_eq_u32 vcc, 0, v0\ns_and_saveexec_b64 s[66:67], vcc")
    a(f"buffer_atomic_or v26, v27, s[{DB}:{DB+3}], 0 offen")
    a("s_mov_b64 exec, s[66:67]")
    a("v_mov_b32 v22, 0\nv_mov_b32 v23, 0")
    a(f"s_cmp_eq_u32 s{R}, 0\ns_cbranch_scc1 K1_hdone")
    a(f"s_lshl_b32 s39, 1, s{R}\ns_sub_u32 s39, s39, 1      ; mask\ns_mov_b32 s65, 0x20000")
    a("K1_poll:")
    a(f"buffer_load_dword v26, v27, s[{DB}:{DB+3}], 0 offen sc1")
    a("s_waitcnt vmcnt(0)\nv_readfirstlane_b32 s38, v26\ns_and_b32 s38, s38, s39\ns_cmp_eq_u32 s38, s39\ns_cbranch_scc1 K1_polled")
    a("s_sleep 2\ns_sub_u32 s65, s65, 1\ns_cmp_lg_u32 s65, 0\ns_cbranch_scc1 K1_poll")
    a("K1_polled:")
    VS = 160
    a(f"s_lshl_b32 s38, s{C}, 8\ns_add_u32 s38, s38, {S_OFF}")
    for j in range(15):
        a(f"buffer_load_dwordx2 {vr(VS+2*j,2)}, v20, s[{WS}:{WS+3}], s38 offen sc1")
        a("s_add_u32 s38, s38, 4096")
    a("s_waitcnt vmcnt(0)")
    for j in range(15):
        a(f"s_cmp_gt_u32 s{R}, {j}\ns_cbranch_scc0 K1_hdone")
        cfma_new(a, 24, 25, vl128r, vl128i, 22, 23, VS+2*j, VS+2*j+1)
        a("v_mov_b32 v22, v24\nv_mov_b32 v23, v25")
    a("K1_hdone:")
    a(f"v_add_u32 v21, {HIN_LDS}, v20")
    cur, nxt = (22, 23), (24, 25)
    for s in range(16):
        a(f"ds_write_b64 v21, v[{cur[0]}:{cur[1]}] offset:{256*s}")
        if s < 15:
            cfma_new(a, nxt[0], nxt[1], vl8r, vl8i, cur[0], cur[1], VE+2*s, VE+2*s+1)
            cur, nxt = nxt, cur
    a("s_waitcnt lgkmcnt(0)")
    a("K1_nohelper:")
    P.stamp(5)
    a("s_barrier                              ; B_H")
    P.flush(0, 6, 2, W, WS, 4, 0)
    a("s_endpgm")

    a("K1_consumer:")
    SP = 44
    ACA, ACB = 16, 48
    F0, F1 = 104, 156
    VXA, VBA, VWA = 2, 4, 225
    VLAM = 208
    VP = 212
    a("v_and_b32 v13, 15, v0                  ; j\nv_lshrrev_b32 v14, 4, v0               ; G")
    a(f"s_lshl_b32 s38, s{C}, 5\nv_add_u32 v15, s38, v13\nv_lshlrev_b32 v15, 1, v15")
    for (p, off) in ((6, 0), (8, 1), (18, 2)):
        srd(a, SP, p, 1024)
        a(f"buffer_load_ushort v{VP+off}, v15, s[{SP}:{SP+3}], 0 offen")
        a(f"buffer_load_ushort v{VP+3+off}, v15, s[{SP}:{SP+3}], 0 offen offset:32")
    srd(a, SP, 22, 3584)
    a(f"s_mul_i32 s38, s{C}, 224\nv_lshlrev_b32 v15, 3, v14\nv_add_u32 v15, s38, v15")
    for fs in range(7): a(f"buffer_load_dwordx2 {vr(ACB+8*fs+4,2)}, v15, s[{SP}:{SP+3}], 0 offen offset:{32*fs}")
    a(f"""
    v_lshrrev_b32 v15, 2, v13
    v_lshlrev_b32 v1, 3, v15
    v_and_b32 v12, 3, v13
    v_add_u32 v1, v1, v12
    s_lshl_b32 s38, s{W}, 5
    v_add_u32 v1, s38, v1
    v_lshlrev_b32 v1, 7, v1
    v_lshrrev_b32 v12, 1, v13
    v_and_b32 v12, 1, v12
    v_lshlrev_b32 v15, 1, v15
    v_or_b32 v12, v12, v15
    """)
    for kk in range(2):
        a(f"v_add_u32 v15, {4*kk}, v14\nv_xor_b32 v15, v15, v12\nv_lshlrev_b32 v15, 4, v15\nv_add_u32 v{VXA+kk}, v1, v15")
    a(f"v_lshlrev_b32 v1, 7, v13\nv_add_u32 v1, {BB}, v1\nv_lshrrev_b32 v12, 1, v13")
    for kk in range(2):
        a(f"v_add_u32 v15, {4*kk}, v14\nv_xor_b32 v15, v15, v12\nv_lshlrev_b32 v15, 4, v15\nv_add_u32 v{VBA+kk}, v1, v15")
    a(f"""
    v_lshrrev_b32 v15, 2, v13
    v_lshlrev_b32 v1, 3, v14
    v_add_u32 v1, v1, v15
    v_lshlrev_b32 v1, 8, v1
    v_add_u32 v1, {WBASE}, v1
    v_and_b32 v12, 1, v13
    v_lshlrev_b32 v12, 3, v12
    v_add_u32 v1, v1, v12
    v_and_b32 v12, 1, v14
    v_lshlrev_b32 v12, 2, v12
    v_or_b32 v12, v12, v15
    v_lshlrev_b32 v12, 1, v12
    v_lshrrev_b32 v15, 1, v13
    v_and_b32 v15, 1, v15
    """)
    for fs in range(7):
        a(f"v_add_u32 v{VWA+fs}, {2*fs}, v15\nv_xor_b32 v{VWA+fs}, v{VWA+fs}, v12\nv_lshlrev_b32 v{VWA+fs}, 4, v{VWA+fs}\nv_add_u32 v{VWA+fs}, v1, v{VWA+fs}")
    for i in range(32): a(f"v_mov_b32 v{ACA+i}, 0")
    a("s_waitcnt vmcnt(0)")
    for ch in range(2):
        param_compute(a, VP+3*ch, VP+3*ch+1, VP+3*ch+2, VLAM+2*ch, VLAM+2*ch+1, VP+8)
    for fs in range(7):
        b = ACB + 8*fs
        a(f"v_lshlrev_b32 v{b}, 16, v{b+4}\nv_and_b32 v{b+1}, 0xffff0000, v{b+4}\nv_lshlrev_b32 v{b+2}, 16, v{b+5}\nv_and_b32 v{b+3}, 0xffff0000, v{b+5}")
        a(f"v_mov_b32 v{b+4}, v{b}\nv_mov_b32 v{b+5}, v{b+1}\nv_mov_b32 v{b+6}, v{b+2}\nv_mov_b32 v{b+7}, v{b+3}")
    P.stamp(1)
    def read_list(fset, slot, kk):
        L = []
        for mt in range(2): L.append((('x', mt), f"ds_read_b128 {vr(fset+4*mt,4)}, v{VXA+kk} offset:{XB + slot*16384 + mt*512}"))
        for s in range(4): L.append((('b', s), f"ds_read_b128 {vr(fset+8+4*s,4)}, v{VBA+kk} offset:{slot*8192 + s*2048}"))
        for fs in range(7):
            for h in range(2):
                L.append((('w', fs, h), f"ds_read_b64_tr_b16 {vr(fset+24+4*fs+2*h,2)}, v{VWA+fs} offset:{slot*16384 + kk*8192 + h*1024}"))
        return L
    def mfma_list(fset):
        L = []
        for s in range(4):
            for mt in range(2):
                acc = ACA + 16*mt + 4*s
                L.append(([('x', mt), ('b', s)], f"v_mfma_f32_16x16x32_bf16 {vr(acc,4)}, {vr(fset+4*mt,4)}, {vr(fset+8+4*s,4)}, {vr(acc,4)}"))
        for fs in range(7):
            for mt in range(2):
                acc = ACB + 8*fs + 4*mt
                L.append(([('x', mt), ('w', fs, 1)], f"v_mfma_f32_16x16x32_bf16 {vr(acc,4)}, {vr(fset+24+4*fs,4)}, {vr(fset+4*mt,4)}, {vr(acc,4)}"))
        return L
    def block(cur_set, pending, nxt_reads):
        mf = mfma_list(cur_set)
        nr = len(nxt_reads)
        per_gap = [0]*len(mf)
        k = 0; g = 0
        while k < nr:
            n = 2 if g < 4 else 1
            n = min(n, nr-k); per_gap[g] = n; k += n; g += 1
        issued = 0
        done_upto = -1 if pending else None
        ri = 0
        for gi, (deps, txt) in enumerate(mf):
            if pending:
                need = max(pending.index(d) for d in deps)
                if need > done_upto:
                    n = (len(pending) - 1 - need) + issued
                    a(f"s_waitcnt lgkmcnt({min(n,15)})")
                    if n <= 15: done_upto = need
                    else: done_upto = need
            a(txt)
            for _ in range(per_gap[gi]):
                a(nxt_reads[ri][1]); ri += 1; issued += 1
    a("s_barrier                              ; B_0")
    P.stamp(2)
    r0 = read_list(F0, 0, 0)
    for _, t in r0: a(t)
    pending = [k for k, _ in r0]
    for i in range(8):
        s = i % 3
        r1 = read_list(F1, s, 1)
        block(F0, pending, r1)
        a("s_waitcnt lgkmcnt(0)")
        if i < 7:
            a("s_barrier")
            rn = read_list(F0, (i+1) % 3, 0)
            block(F1, None, rn)
            pending = [k for k, _ in rn]
        else:
            block(F1, None, [])
    P.stamp(3)
    a("s_nop 7")
    def raw(sc, u, im): return ACA + 16*(u >> 2) + 4*(sc + 2*im) + (u & 3)
    VE = VP
    cur = [(raw(0,0,0), raw(0,0,1)), (raw(1,0,0), raw(1,0,1))]
    for u in range(1, 8):
        for sc in range(2):
            n = (VE + 4*sc + 2*(u & 1), VE + 4*sc + 2*(u & 1) + 1)
            cfma_new(a, n[0], n[1], VLAM+2*sc, VLAM+2*sc+1, cur[sc][0], cur[sc][1], raw(sc,u,0), raw(sc,u,1))
            cur[sc] = n
    a(f"s_lshl_b32 s38, s{W}, 2\nv_add_u32 v1, s38, v14\nv_lshlrev_b32 v1, 8, v1\nv_lshlrev_b32 v12, 3, v13\nv_add_u32 v1, v1, v12      ; seg*256 + j*8")
    a(f"v_add_u32 v12, {E_LDS}, v1")
    a(f"ds_write_b64 v12, v[{cur[0][0]}:{cur[0][1]}]\nds_write_b64 v12, v[{cur[1][0]}:{cur[1][1]}] offset:128")
    a("s_waitcnt lgkmcnt(0)\ns_barrier        ; B_E")
    P.stamp(4)
    a(f"s_mov_b32 s46, {LOG2E}\ns_mov_b32 s47, {LOG2E}")
    a(f"s_lshl_b32 s38, s{R}, 2\ns_add_u32 s38, s38, s{W}\ns_mul_i32 s38, s38, {KS}\ns_mul_i32 s39, s{C}, 7\ns_add_u32 s48, s38, s39\ns_add_u32 s48, s48, 64\ns_lshl_b32 s48, s48, 10")
    a("v_lshlrev_b32 v15, 4, v0               ; lane*16")
    TM = F0
    for fs in range(7):
        b = ACB + 8*fs
        T_, E_, A_ = TM, TM+8, TM+16
        for p in range(4): a(f"v_pk_mul_f32 {vr(T_+2*p,2)}, {vr(b+2*p,2)}, s[46:47]")
        for p in range(8): a(f"v_exp_f32 v{E_+p}, v{T_+p}")
        for p in range(4): a(f"v_pk_add_f32 {vr(A_+2*p,2)}, {vr(E_+2*p,2)}, 2.0 op_sel_hi:[1,0]")
        for p in range(4): a(f"v_pk_fma_f32 {vr(A_+2*p,2)}, {vr(E_+2*p,2)}, {vr(A_+2*p,2)}, 2.0 op_sel_hi:[1,1,0]")
        for p in range(8): a(f"v_rcp_f32 v{T_+p}, v{A_+p}")
        for p in range(4): a(f"v_pk_fma_f32 {vr(T_+2*p,2)}, {vr(T_+2*p,2)}, -2.0, 1.0 op_sel_hi:[1,0,0]")
        for p in range(4): a(f"v_pk_mul_f32 {vr(T_+2*p,2)}, {vr(b+2*p,2)}, {vr(T_+2*p,2)}")
        O_ = TM + 24 + 4*(fs & 1)
        for p in range(4): a(f"v_cvt_pk_bf16_f32 v{O_+p}, v{T_+2*p}, v{T_+2*p+1}")
        a("s_nop 1")
        a(f"v_permlane16_swap_b32 v{O_}, v{O_+2}\nv_permlane16_swap_b32 v{O_+1}, v{O_+3}")
        a(f"buffer_store_dwordx4 {vr(O_,4)}, v15, s[{WS}:{WS+3}], s48 offen")
        a("s_add_u32 s48, s48, 1024")
    P.stamp(5)
    a("s_barrier                              ; B_H")
    a(f"v_add_u32 v12, {HIN_LDS}, v1")
    a(f"ds_read_b64 {vr(VE,2)}, v12\nds_read_b64 {vr(VE+4,2)}, v12 offset:128")
    a("s_waitcnt lgkmcnt(0)")
    prev = [(VE, VE+1), (VE+4, VE+5)]
    for u in range(8):
        for sc in range(2):
            br, bi = raw(sc,u,0), raw(sc,u,1)
            lr, li = VLAM+2*sc, VLAM+2*sc+1
            hr, hi = prev[sc]
            a(f"v_fma_f32 v{br}, v{lr}, v{hr}, v{br}\nv_fma_f32 v{bi}, v{lr}, v{hi}, v{bi}")
            a(f"v_fma_f32 v{br}, -v{li}, v{hi}, v{br}\nv_fma_f32 v{bi}, v{li}, v{hr}, v{bi}")
            prev[sc] = (br, bi)
    a(f"s_mul_i32 s38, s{W}, {TR_WAVE}\nv_mul_u32_u24 v12, {TR_STRIDE}, v13\nv_lshlrev_b32 v1, 3, v14\nv_add_u32 v12, v12, v1\nv_add_u32 v12, s38, v12")
    for part in range(2):
        for sc in range(2):
            bl = 2*part + sc
            for mt in range(2):
                src = ACA + 16*mt + 4*(sc + 2*part)
                d = TM + 2*(2*bl + mt)
                a(f"v_cvt_pk_bf16_f32 v{d}, v{src}, v{src+1}\nv_cvt_pk_bf16_f32 v{d+1}, v{src+2}, v{src+3}")
                a(f"ds_write_b64 v12, {vr(d,2)} offset:{bl*16*TR_STRIDE + 32*mt}")
    a(f"""
    v_lshrrev_b32 v1, 5, v0
    v_lshlrev_b32 v1, 3, v1
    v_lshrrev_b32 v12, 2, v13
    v_add_u32 v1, v1, v12
    v_mul_u32_u24 v1, {TR_STRIDE}, v1
    v_and_b32 v12, 1, v14
    v_lshlrev_b32 v12, 5, v12
    v_add_u32 v1, v1, v12
    v_and_b32 v12, 3, v13
    v_lshlrev_b32 v12, 3, v12
    v_add_u32 v1, v1, v12
    v_add_u32 v1, s38, v1
    s_waitcnt lgkmcnt(0)
    """)
    for bl in range(4):
        for h in range(2):
            a(f"ds_read_b64_tr_b16 {vr(TM+16+4*bl+2*h,2)}, v1 offset:{bl*16*TR_STRIDE + h*4*TR_STRIDE}")
    a(f"s_lshl_b32 s38, s{R}, 2\ns_add_u32 s38, s38, s{W}\ns_mul_i32 s38, s38, {KS}\ns_lshl_b32 s39, s{C}, 2\ns_add_u32 s48, s38, s39\ns_lshl_b32 s48, s48, 10")
    a("s_waitcnt lgkmcnt(0)")
    for bl in range(4):
        a(f"buffer_store_dwordx4 {vr(TM+16+4*bl,4)}, v15, s[{WS}:{WS+3}], s48 offen offset:{1024*bl}")
    P.stamp(6)
    P.flush(0, 7, 2, W, WS, 4, 0)
    a("K1_end:\ns_endpgm")
    return dict(vgpr=232, sgpr=100)

def kd(name, vgpr, sgpr):
    v = (vgpr + 7)//8*8
    return f""".p2align 6
.amdhsa_kernel {name}
  .amdhsa_next_free_vgpr {v}
  .amdhsa_next_free_sgpr {sgpr}
  .amdhsa_accum_offset {v}
  .amdhsa_group_segment_fixed_size 0
  .amdhsa_kernarg_size 136
  .amdhsa_user_sgpr_count 2
  .amdhsa_user_sgpr_kernarg_segment_ptr 1
  .amdhsa_system_sgpr_workgroup_id_x 1
  .amdhsa_float_denorm_mode_32 3
.end_amdhsa_kernel
"""

def header():
    ref = open("cdna_kernels/" + NAME + ".s.ref").read().split("\n")
    out = []
    for l in ref:
        if l.startswith("; @launch") or l.startswith("; Override"): break
        out.append(l)
    return "\n".join(out) + "\n"

def build(which="both"):
    a = Asm()
    k1, k2 = "ssm_p1_kernel", "ssm_p2_kernel"
    hdr = header()
    if which in ("both", "k1"): hdr += f"; @launch kernel={k1} grid=(256,1,1) block=(512,1,1) lds=163840\n"
    if which in ("both", "k2"): hdr += f"; @launch kernel={k2} grid=(256,1,1) block=(512,1,1) lds=131072\n"
    a('.amdgcn_target "amdgcn-amd-amdhsa--gfx950"\n.text')
    a(f".globl {k1}"); i1 = gen_k1(a, k1)
    a(f".globl {k2}"); i2 = gen_k2(a, k2)
    txt = hdr + a.text() + '.section .rodata,"a"\n' + kd(k1, **i1) + kd(k2, **i2)
    return txt

if __name__ == "__main__":
    if "--prof" in sys.argv: PROFILE = True
    which = "both"
    for w in ("k1", "k2"):
        if "--" + w in sys.argv: which = w
    out = [x for x in sys.argv[1:] if not x.startswith("--")]
    path = out[0] if out else "cdna_kernels/" + NAME + ".s"
    open(path, "w").write(build(which))
    print("wrote", path)
```

```python
class Asm:
    def __init__(self):
        self.L = []
        self.uid = 0
    def __call__(self, s):
        for line in s.split("\n"):
            line = line.strip()
            if line: self.L.append(line)
    def label(self, name): self.L.append(name + ":")
    def newlabel(self, base):
        self.uid += 1
        return f"L_{base}_{self.uid}"
    def text(self):
        out = []
        for l in self.L:
            out.append(l if l.endswith(":") or l.startswith(".") or l.startswith(";") else "    " + l)
        return "\n".join(out) + "\n"

def vr(b, n=1): return f"v{b}" if n == 1 else f"v[{b}:{b+n-1}]"
def sr(b, n=1): return f"s{b}" if n == 1 else f"s[{b}:{b+n-1}]"

def srd(a, dst, ptr, nbytes):
    a(f"s_mov_b32 s{dst}, s{ptr} ; SRD")
    a(f"s_and_b32 s{dst+1}, s{ptr+1}, 0xffff ; SRD")
    a(f"s_mov_b32 s{dst+2}, {nbytes} ; SRD")
    a(f"s_mov_b32 s{dst+3}, 0x20000 ; SRD")

import re
def lint_srd(text):
    lines = [l.strip() for l in text.split("\n")]
    def sdst(l):
        m = re.match(r"(s_\w+|v_readfirstlane_b32|v_readlane_b32|v_cmp\w+)\s+(s\[(\d+):(\d+)\]|s(\d+))\s*,", l)
        if not m: return []
        op = m.group(1)
        if op.startswith(("s_cmp", "s_cbranch", "s_waitcnt", "s_bitcmp")): return []
        if m.group(3): return list(range(int(m.group(3)), int(m.group(4))+1))
        return [int(m.group(5))]
    probs = []
    for i, l in enumerate(lines):
        d = sdst(l)
        if not d or "; SRD" in l: continue
        for j in range(i+1, len(lines)):
            x = lines[j]
            if x.startswith("s_endpgm"): break
            if "; SRD" in x and set(sdst(x)) & set(d): d = [r for r in d if r not in sdst(x)]
            if not d: break
            m = re.search(r"buffer_\w+\s+.*?s\[(\d+):(\d+)\]", x)
            if m and int(m.group(2)) - int(m.group(1)) == 3:
                rng = set(range(int(m.group(1)), int(m.group(2))+1))
                if rng & set(d):
                    probs.append((i, l, j, x)); break
    return probs
```

```python
import sys
from asmlib import *

NAME = "gated_mix__ssm_conv_s5__dense_activation_mish__prompt"
AH_OFF = 0
G_OFF  = 0xE00000
FA_OFF = 0xE08000
FH_OFF = 0xE0A000
S_OFF  = 0xE10000
PROF_OFF = 0xF00000
WS_BYTES = 0x1000000
KS = 176
LOG2E = 0x3fb8aa3b
INV2PI = 0x3e22f983
PROFILE = False
SPIN = 0x40000
import os
OPT = dict(kv.split('=') for kv in os.environ.get('OPT', '').split(',') if kv)
def opt(k, d): return type(d)(OPT.get(k, d))

XB, BB, WBASE = 0, 49152, 73728
NS = 9
EXT = NS*16384
E_LDS = EXT
NONCE_LDS = EXT + 4096
TR_LDS = EXT + 4352
TR_STRIDE = 72
TR_WAVE = 2*16*TR_STRIDE
assert TR_LDS + 4*TR_WAVE <= 163840

class Prof:
    def __init__(self, a, base=70): self.a, self.base = a, base
    def stamp(self, idx):
        if PROFILE: self.a(f"s_memtime s[{self.base+2*idx}:{self.base+2*idx+1}]")
    def flush(self, nst, s_id, s_wave, ws_srd, vtmp, vlane):
        if not PROFILE: return
        a = self.a
        a(f"s_memrealtime s[{self.base+2*nst}:{self.base+2*nst+1}]")
        a("s_waitcnt lgkmcnt(0)")
        a(f"s_lshl_b32 s68, s{s_id}, 3\ns_add_u32 s68, s68, s{s_wave}\ns_lshl_b32 s68, s68, 6\ns_add_u32 s68, s68, {PROF_OFF}")
        a(f"v_mov_b32 v{vtmp}, 0")
        for i in range(nst+1):
            a(f"v_mov_b32 v{vtmp+1}, s{self.base+2*i}")
            a(f"v_cmp_eq_u32 vcc, {i}, v{vlane}\ns_nop 1\nv_cndmask_b32 v{vtmp}, v{vtmp}, v{vtmp+1}, vcc")
        a(f"v_lshlrev_b32 v{vtmp+1}, 2, v{vlane}")
        a(f"v_cmp_gt_u32 vcc, 16, v{vlane}\ns_and_saveexec_b64 s[66:67], vcc")
        a(f"buffer_store_dword v{vtmp}, v{vtmp+1}, s[{ws_srd}:{ws_srd+3}], s68 offen")
        a("s_mov_b64 exec, s[66:67]")

def param_compute(a, vLre, vLim, vldt, vlr, vli, t, want_coef=None, scale2=False):
    a(f"""
    v_lshlrev_b32 v{vLre}, 16, v{vLre}
    v_lshlrev_b32 v{vLim}, 16, v{vLim}
    v_lshlrev_b32 v{vldt}, 16, v{vldt}
    v_mul_f32 v{t}, {LOG2E}, v{vldt}
    v_exp_f32 v{t}, v{t}
    s_nop 1
    v_cvt_pk_bf16_f32 v{t}, v{t}, v{t}
    v_lshlrev_b32 v{t}, 16, v{t}
    v_mul_f32 v{t+1}, v{t}, v{vLre}
    v_mul_f32 v{t+2}, v{t}, v{vLim}
    v_mul_f32 v{t+1}, {LOG2E}, v{t+1}
    v_exp_f32 v{t+1}, v{t+1}
    v_mul_f32 v{t+2}, {INV2PI}, v{t+2}
    v_rndne_f32 v{t+3}, v{t+2}
    v_sub_f32 v{t+2}, v{t+2}, v{t+3}
    v_cos_f32 v{t+3}, v{t+2}
    v_sin_f32 v{t+4}, v{t+2}
    s_nop 1
    v_mul_f32 v{vlr}, v{t+1}, v{t+3}
    v_mul_f32 v{vli}, v{t+1}, v{t+4}
    """)
    if want_coef:
        cr, ci = want_coef
        a(f"""
        v_add_f32 v{t}, -1.0, v{vlr}
        v_mul_f32 v{t+1}, v{vLre}, v{vLre}
        v_fma_f32 v{t+1}, v{vLim}, v{vLim}, v{t+1}
        v_rcp_f32 v{t+1}, v{t+1}
        v_mul_f32 v{t+2}, v{t}, v{vLre}
        v_fma_f32 v{t+2}, v{vli}, v{vLim}, v{t+2}
        v_mul_f32 v{t+3}, v{vli}, v{vLre}
        v_fma_f32 v{t+3}, -v{t}, v{vLim}, v{t+3}
        v_add_f32 v{t+1}, v{t+1}, v{t+1}
        v_mul_f32 v{cr}, v{t+2}, v{t+1}
        v_mul_f32 v{ci}, v{t+3}, v{t+1}
        """)

def csquare(a, dr, di, sr_, si, t):
    a(f"v_mul_f32 v{t}, v{si}, v{si}\nv_mul_f32 v{t+1}, v{sr_}, v{si}\nv_fma_f32 v{dr}, v{sr_}, v{sr_}, -v{t}\nv_add_f32 v{di}, v{t+1}, v{t+1}")

def cfma_new(a, nr, ni, lr, li, hr, hi, br, bi):
    a(f"v_fma_f32 v{nr}, v{lr}, v{hr}, v{br}\nv_fma_f32 v{ni}, v{lr}, v{hi}, v{bi}")
    a(f"v_fma_f32 v{nr}, -v{li}, v{hi}, v{nr}\nv_fma_f32 v{ni}, v{li}, v{hr}, v{ni}")

def poll_flags(a, lbl, vaddr, vtmp, srd_, soff, s_nonce, nlanes_mask_sgpr):
    a(f"s_mov_b32 s65, {SPIN}")
    a(f"s_mov_b64 exec, s[{nlanes_mask_sgpr}:{nlanes_mask_sgpr+1}]")
    a(f"{lbl}:")
    a(f"buffer_load_dword v{vtmp}, v{vaddr}, s[{srd_}:{srd_+3}], s{soff} offen sc1")
    a(f"s_waitcnt vmcnt(0)")
    a(f"v_cmp_ne_u32 vcc, s{s_nonce}, v{vtmp}")
    a(f"s_cbranch_vccz {lbl}_ok")
    a(f"s_sleep {opt('psleep', 1)}\ns_sub_u32 s65, s65, 1\ns_cmp_lg_u32 s65, 0\ns_cbranch_scc1 {lbl}")
    a(f"{lbl}_ok:")
    a("s_mov_b64 exec, -1")

def gen(a, kname):
    P = Prof(a)
    a(f".p2align 8\n.type {kname},@function\n{kname}:")
    a("s_cmp_ge_u32 s2, 256\ns_cbranch_scc1 L_end")
    P.stamp(0)
    a("s_load_dwordx4 s[4:7], s[0:1], 0       ; x, Lre")
    a("s_load_dwordx4 s[8:11], s[0:1], 16")
    a("s_load_dwordx4 s[12:15], s[0:1], 32")
    a("s_load_dwordx4 s[16:19], s[0:1], 48")
    a("s_load_dwordx4 s[20:23], s[0:1], 80    ; w1, b1")
    a("s_load_dwordx4 s[24:27], s[0:1], 96    ; w2, gate_w")
    a("s_load_dwordx4 s[28:31], s[0:1], 120")
    a("s_load_dwordx2 s[96:97], s[0:1], 64    ; Dskip")
    a("s_load_dwordx2 s[98:99], s[0:1], 112   ; out")
    R, C, W, T = 32, 33, 34, 35
    NON = 69
    a(f"""
    s_and_b32 s{T}, s2, 7
    s_lshr_b32 s{T+1}, s2, 3
    s_lshr_b32 s{R}, s{T}, 1
    s_lshl_b32 s{R}, s{R}, 2
    s_lshr_b32 s{C}, s{T+1}, 3
    s_add_u32 s{R}, s{R}, s{C}
    s_and_b32 s{C}, s{T}, 1
    s_lshl_b32 s{C}, s{C}, 3
    s_and_b32 s{T+1}, s{T+1}, 7
    s_add_u32 s{C}, s{C}, s{T+1}
    v_lshrrev_b32 v1, 6, v0
    v_and_b32 v0, 63, v0
    v_readfirstlane_b32 s{W}, v1
    """)
    a(f"s_cmp_ge_u32 s{W}, 4\ns_cbranch_scc0 L_consumer")
    WS = 40
    SX, SB, SW, SP = 44, 48, 52, 56
    LW = 37
    VDX, VDB, VDW = 4, 8, 124
    OX, OB, OW = 60, 61, 62
    a(f"s_sub_u32 s{LW}, s{W}, 4")
    a("v_lshrrev_b32 v12, 3, v0              ; l>>3\nv_and_b32 v13, 7, v0\nv_lshrrev_b32 v14, 4, v0              ; l>>4")
    a(f"s_lshl_b32 s38, s{LW}, 5             ; 32*lw")
    for j in range(4):
        a(f"v_and_b32 v15, 1, v14\nv_or_b32 v15, {j<<1}, v15\nv_xor_b32 v15, v13, v15\nv_lshlrev_b32 v15, 4, v15")
        a(f"v_add_u32 v16, s38, v12\nv_add_u32 v16, {8*j}, v16\nv_lshlrev_b32 v16, 10, v16")
        a(f"v_add_u32 v16, v16, v15\nv_subrev_u32 v{VDX+j}, {1024*j}, v16")
    a(f"s_lshl_b32 s{OX}, s{R}, 17\ns_lshl_b32 s63, s{LW}, 12\ns_lshl_b32 s64, s{LW}, 11")
    a("s_waitcnt lgkmcnt(0)")
    srd(a, SX, 4, 2048*512*2)
    def issue_x(slot):
        a(f"s_add_u32 m0, s63, {XB + slot*16384}\ns_nop 0")
        for j in range(4): a(f"buffer_load_dwordx4 v{VDX+j}, s[{SX}:{SX+3}], s{OX} offen offset:{1024*j} lds")
        a(f"s_add_u32 s{OX}, s{OX}, 128")
    def issue_b(slot):
        a(f"s_add_u32 m0, s64, {BB + slot*8192}\ns_nop 0")
        for j in range(2): a(f"buffer_load_dwordx4 v{VDB+j}, s[{SB}:{SB+3}], s{OB} offen offset:{1024*j} lds")
        a(f"s_add_u32 s{OB}, s{OB}, 128")
    def issue_w(slot):
        a(f"s_add_u32 m0, s63, {WBASE + slot*16384}\ns_nop 0")
        for j in range(4): a(f"buffer_load_dwordx4 v{VDW+j}, s[{SW}:{SW+3}], s{OW} offen offset:{1024*j} lds")
        a(f"s_add_u32 s{OW}, s{OW}, {64*3584}")
    issue_x(0)
    a(f"s_lshl_b32 s38, s{LW}, 4\nv_and_b32 v13, 15, v0\ns_mov_b32 s39, 3584")
    for j in range(4):
        a(f"v_or_b32 v15, {(j>>1)<<2}, v14\nv_lshlrev_b32 v15, 1, v15\nv_xor_b32 v15, v13, v15")
        a(f"v_add_u32 v16, s38, v14\nv_add_u32 v16, {4*j}, v16\nv_mul_lo_u32 v16, v16, s39")
        a(f"v_lshlrev_b32 v17, 4, v15\nv_add_u32 v16, v16, v17\nv_subrev_u32 v16, {1024*j}, v16")
        a(f"v_mov_b32 v17, 0x7ff00000\nv_cmp_gt_u32 vcc, 14, v15\ns_nop 1\nv_cndmask_b32 v{VDW+j}, v17, v16, vcc")
    srd(a, SW, 20, 512*1792*2)
    a(f"s_mul_i32 s{OW}, s{C}, 224")
    issue_w(0)
    a(f"v_and_b32 v13, 7, v0\ns_and_b32 s38, s{LW}, 1\ns_lshl_b32 s38, s38, 4")
    for j in range(2):
        a(f"v_add_u32 v15, {4*j}, v14\nv_and_b32 v15, 7, v15\nv_xor_b32 v15, v13, v15\nv_lshlrev_b32 v15, 4, v15")
        a(f"v_add_u32 v16, s38, v12\nv_add_u32 v16, {8*j}, v16\nv_lshlrev_b32 v16, 10, v16")
        a(f"v_add_u32 v16, v16, v15\nv_subrev_u32 v{VDB+j}, {1024*j}, v16")
    a(f"s_cmp_ge_u32 s{LW}, 2\ns_cselect_b32 s38, s12, s10\ns_cselect_b32 s39, s13, s11")
    srd(a, SB, 38, 512*512*2)
    a(f"s_lshl_b32 s{OB}, s{C}, 15")
    issue_b(0)
    for k in (1, 2): issue_x(k); issue_w(k); issue_b(k)
    P.stamp(1)
    srd(a, WS, 30, WS_BYTES)
    DB = 84
    srd(a, DB, 28, 256)
    a(f"s_cmp_eq_u32 s2, 0\ns_cbranch_scc0 L_nononce\ns_cmp_eq_u32 s{LW}, 3\ns_cbranch_scc0 L_nononce")
    a("s_memrealtime s[38:39]\ns_waitcnt lgkmcnt(0)\ns_or_b32 s38, s38, 1\nv_mov_b32 v20, s38\nv_mov_b32 v21, 0")
    a(f"buffer_store_dword v20, v21, s[{DB}:{DB+3}], 0 offen sc1")
    a("L_nononce:")
    a("s_waitcnt vmcnt(20)\ns_barrier                ; B_0")
    P.stamp(2)
    vLre, vLim, vldt = 40, 41, 42
    vlr, vli, vl8r, vl8i, vl128r, vl128i = 44, 45, 48, 49, 50, 51
    for k in range(1, 8):
        n = 10 if k <= 6 else 0
        if k == 6:
            a(f"s_waitcnt vmcnt({10 + 12})")
        elif k == 7:
            a("s_waitcnt vmcnt(12)")
        else:
            a(f"s_waitcnt vmcnt({n})")
        a(f"s_barrier                ; B_{k}")
        if k + 2 <= 7:
            s = (k+2) % 3
            issue_x(s); issue_w(s); issue_b(s)
        if k == 5:
            a(f"v_and_b32 v2, 31, v0\ns_lshl_b32 s38, s{C}, 5\nv_add_u32 v2, s38, v2\nv_lshlrev_b32 v2, 1, v2")
            srd(a, SP, 6, 1024);  a(f"buffer_load_ushort v{vLre}, v2, s[{SP}:{SP+3}], 0 offen")
            srd(a, SP, 8, 1024);  a(f"buffer_load_ushort v{vLim}, v2, s[{SP}:{SP+3}], 0 offen")
            srd(a, SP, 18, 1024); a(f"buffer_load_ushort v{vldt}, v2, s[{SP}:{SP+3}], 0 offen")
            srd(a, SP, 26, 1024)
            a(f"v_lshlrev_b32 v3, 4, v0\nbuffer_load_dwordx4 v[60:63], v3, s[{SP}:{SP+3}], 0 offen")
            a(f"s_lshl_b32 s38, s{R}, 7\ns_lshl_b32 s39, s{C}, 3\ns_add_u32 s38, s38, s39\ns_lshl_b32 s38, s38, 10")
            for i in range(8):
                a(f"buffer_load_dwordx4 {vr(64+4*i,4)}, v3, s[{SX}:{SX+3}], s38 offen")
                a("s_add_u32 s38, s38, 1024")
    P.stamp(3)
    a("v_mov_b32 v21, 0\ns_mov_b32 s65, %d" % SPIN)
    a("L_npoll:")
    a(f"buffer_load_dword v20, v21, s[{DB}:{DB+3}], 0 offen sc1\ns_waitcnt vmcnt(0)\nv_readfirstlane_b32 s{NON}, v20\ns_cmp_lg_u32 s{NON}, 0\ns_cbranch_scc1 L_npoll_ok")
    a("s_sleep 4\ns_sub_u32 s65, s65, 1\ns_cmp_lg_u32 s65, 0\ns_cbranch_scc1 L_npoll")
    a("L_npoll_ok:")
    a(f"v_mov_b32 v20, s{NON}\nv_mov_b32 v21, {NONCE_LDS}\nds_write_b32 v21, v20\ns_waitcnt lgkmcnt(0)")
    a("s_barrier                ; B_8")
    a(f"s_cmp_eq_u32 s{LW}, 2\ns_cbranch_scc1 L_bloader\ns_cmp_eq_u32 s{LW}, 3\ns_cbranch_scc1 L_helper")
    a(f"s_cmp_eq_u32 s{LW}, 0\ns_cbranch_scc0 L_nogate")
    for i in range(8):
        a(f"v_mov_b32 v{96+i}, 0")
    for i in range(8):
        for e in range(4): a(f"v_dot2c_f32_bf16 v{96+i}, v{64+4*i+e}, v{60+e}")
    for dpp in ("quad_perm:[1,0,3,2]", "quad_perm:[2,3,0,1]", "row_half_mirror", "row_mirror"):
        a("s_nop 1")
        for i in range(8): a(f"v_add_f32_dpp v{96+i}, v{96+i}, v{96+i} {dpp} row_mask:0xf bank_mask:0xf")
    for sw in ("v_permlane16_swap_b32", "v_permlane32_swap_b32"):
        for i in range(8): a(f"v_mov_b32 v{104+i}, v{96+i}")
        a("s_nop 1")
        for i in range(8): a(f"{sw} v{96+i}, v{104+i}")
        a("s_nop 1")
        for i in range(8): a(f"v_add_f32 v{96+i}, v{96+i}, v{104+i}")
    a("v_mov_b32 v20, v96")
    for i in range(1, 8):
        a(f"v_cmp_eq_u32 vcc, {i}, v0\ns_nop 1\nv_cndmask_b32 v20, v20, v{96+i}, vcc")
    a(f"v_mul_f32 v20, {LOG2E ^ 0x80000000}, v20\nv_exp_f32 v20, v20\ns_nop 0\nv_add_f32 v20, 1.0, v20\nv_rcp_f32 v20, v20")
    a(f"s_lshl_b32 s38, s{R}, 7\ns_lshl_b32 s39, s{C}, 3\ns_add_u32 s38, s38, s39\ns_lshl_b32 s38, s38, 2\ns_add_u32 s38, s38, {G_OFF}")
    a("v_lshlrev_b32 v21, 2, v0\nv_cmp_gt_u32 vcc, 8, v0\ns_and_saveexec_b64 s[66:67], vcc")
    a(f"buffer_store_dword v20, v21, s[{WS}:{WS+3}], s38 offen sc1")
    a("s_mov_b64 exec, s[66:67]\ns_waitcnt vmcnt(0)")
    a("L_nogate:")
    OA, MS = 60, 61
    a(f"s_and_b32 s38, s{C}, 1\ns_lshl_b32 s38, s38, 1\ns_add_u32 s38, s38, s{LW}       ; m")
    a(f"s_lshl_b32 s39, s{R}, 2\ns_add_u32 s39, s39, s38\ns_mul_i32 s{OA}, s39, {KS*1024}")
    a(f"s_lshl_b32 s62, s39, 6")
    a(f"s_lshl_b32 s{MS}, s{LW}, 12")
    a("v_lshlrev_b32 v1, 4, v0\nv_lshlrev_b32 v2, 2, v0")
    a("s_mov_b64 s[58:59], 0xffff")
    a(f"s_add_u32 s63, s62, {FA_OFF}")
    P.stamp(4)
    poll_flags(a, "L_pollA", 2, 20, WS, 63, NON, 58)
    P.stamp(5)
    def issue_a():
        a(f"s_mov_b32 m0, s{MS}")
        a(f"s_add_u32 s{MS}, s{MS}, 16384\ns_cmp_ge_u32 s{MS}, {NS*16384}\ns_cselect_b32 s38, {NS*16384}, 0\ns_sub_u32 s{MS}, s{MS}, s38")
        for j in range(4): a(f"buffer_load_dwordx4 v1, s[{WS}:{WS+3}], s{OA} offen offset:{1024*j} sc1 lds")
        a(f"s_add_u32 s{OA}, s{OA}, 4096")
    for k in range(NS): issue_a()
    a("s_barrier                ; B_E")
    a(f"s_waitcnt vmcnt({4*(NS-1)})\ns_barrier                ; P_0")
    P.stamp(6)
    def aloop(lbl, n):
        a(f"s_mov_b32 s64, {n}\n{lbl}:")
        a(f"s_waitcnt vmcnt({4*(NS-2)})\ns_barrier")
        issue_a()
        a(f"s_sub_u32 s64, s64, 1\ns_cmp_lg_u32 s64, 0\ns_cbranch_scc1 {lbl}")
    aloop("L_a1", 8)
    a("s_barrier                ; B_H")
    aloop("L_a2", 11)
    a(f"s_add_u32 s63, s62, {FH_OFF}")
    a(f"s_waitcnt vmcnt({4*(NS-2)})\ns_barrier                ; P_20")
    P.stamp(7)
    poll_flags(a, "L_pollH", 2, 20, WS, 63, NON, 58)
    issue_a()
    aloop("L_a3", 15)
    for k in range(36, 44):
        a(f"s_waitcnt vmcnt({4*(43-k)})\ns_barrier")
    P.stamp(8)
    P.flush(9, 2, W, WS, 4, 0)
    a("s_endpgm")
    a("L_bloader:")
    SW2, SCR, SCI = 44, 48, 52
    srd(a, SW2, 24, 1792*512*2); srd(a, SCR, 14, 512*512*2); srd(a, SCI, 16, 512*512*2)
    VW, VC = 64, 72
    a("v_lshrrev_b32 v12, 3, v0\nv_and_b32 v13, 7, v0\nv_lshrrev_b32 v14, 4, v0")
    a("v_and_b32 v15, 1, v14\nv_lshlrev_b32 v15, 2, v15\nv_xor_b32 v15, v13, v15\nv_lshlrev_b32 v15, 4, v15")
    a("v_lshlrev_b32 v16, 10, v12\nv_add_u32 v16, v16, v15")
    for j in range(8): a(f"v_add_u32 v{VW+j}, {8192*j - 1024*(j&3)}, v16")
    for j in range(8):
        a(f"v_add_u32 v15, {4*j}, v14\nv_and_b32 v15, 7, v15\nv_xor_b32 v15, v13, v15\nv_lshlrev_b32 v15, 4, v15")
        a(f"v_lshlrev_b32 v16, 10, v12\nv_add_u32 v16, v16, v15\nv_add_u32 v{VC+j}, {8192*j - 1024*(j&3)}, v16")
    OBW, MS = 60, 61
    a(f"s_lshr_b32 s62, s{C}, 1               ; ct64")
    a(f"s_lshl_b32 s{OBW}, s62, 7             ; 128*ct64")
    a(f"s_mov_b32 s{MS}, 8192")
    def issue_bt(vbase, srd_, step):
        a(f"s_mov_b32 m0, s{MS}")
        a(f"s_add_u32 s39, s{MS}, 4096")
        for j in range(4): a(f"buffer_load_dwordx4 v{vbase+j}, s[{srd_}:{srd_+3}], s{OBW} offen offset:{1024*j} lds")
        a("s_mov_b32 m0, s39")
        a(f"s_add_u32 s{MS}, s{MS}, 16384\ns_cmp_ge_u32 s{MS}, {NS*16384}\ns_cselect_b32 s38, {NS*16384}, 0\ns_sub_u32 s{MS}, s{MS}, s38")
        for j in range(4, 8): a(f"buffer_load_dwordx4 v{vbase+j}, s[{srd_}:{srd_+3}], s{OBW} offen offset:{1024*(j&3)} lds")
        if step: a(f"s_add_u32 s{OBW}, s{OBW}, {step}")
    BD = 7
    if opt('latepf', 0): a("s_barrier                ; B_E")
    for k in range(BD): issue_bt(VW, SW2, 65536)
    P.stamp(4)
    if not opt('latepf', 0): a("s_barrier                ; B_E")
    def bloop(lbl, n, body):
        a(f"s_mov_b32 s64, {n}\n{lbl}:")
        body()
        a(f"s_sub_u32 s64, s64, 1\ns_cmp_lg_u32 s64, 0\ns_cbranch_scc1 {lbl}")
    def bstep_w():
        a(f"s_waitcnt vmcnt({8*(BD-1)})\ns_barrier"); issue_bt(VW, SW2, 65536)
    bloop("L_b1", 9, bstep_w)
    P.stamp(5)
    a("s_barrier                ; B_H")
    bloop("L_b2", 12, bstep_w)
    a(f"s_lshl_b32 s{OBW}, s62, 16")
    def bstep_c2():
        a(f"s_waitcnt vmcnt({8*(BD-1)})\ns_barrier"); issue_bt(VC, SCR, 0)
        a(f"s_waitcnt vmcnt({8*(BD-1)})\ns_barrier"); issue_bt(VC, SCI, 128)
    bloop("L_b3", 8, bstep_c2)
    for k in range(37, 44):
        a(f"s_waitcnt vmcnt({8*(43-k)})\ns_barrier")
    P.stamp(6)
    P.flush(9, 2, W, WS, 4, 0)
    a("s_endpgm")
    a("L_helper:")
    param_compute(a, vLre, vLim, vldt, vlr, vli, 20)
    csquare(a, vl8r, vl8i, vlr, vli, 20); csquare(a, vl8r, vl8i, vl8r, vl8i, 20); csquare(a, vl8r, vl8i, vl8r, vl8i, 20)
    csquare(a, vl128r, vl128i, vl8r, vl8i, 20)
    for _ in range(3): csquare(a, vl128r, vl128i, vl128r, vl128i, 20)
    a("v_and_b32 v20, 31, v0\nv_lshlrev_b32 v21, 3, v20\nv_add_u32 v21, %d, v21      ; E lds addr\nv_lshlrev_b32 v20, 4, v20              ; S offset in slot" % E_LDS)
    P.stamp(4)
    a("s_barrier                ; B_E")
    VE = 128
    for s in range(16): a(f"ds_read_b64 {vr(VE+2*s,2)}, v21 offset:{256*s}")
    a("s_waitcnt lgkmcnt(0)")
    cur, nxt = (24, 25), (28, 29)
    a(f"v_mov_b32 v24, v{VE}\nv_mov_b32 v25, v{VE+1}")
    for s in range(1, 16):
        cfma_new(a, nxt[0], nxt[1], vl8r, vl8i, cur[0], cur[1], VE+2*s, VE+2*s+1)
        cur, nxt = nxt, cur
    assert cur == (28, 29)
    a(f"v_mov_b32 v30, s{NON}\nv_mov_b32 v31, s{NON}")
    a(f"s_lshl_b32 s38, s{R}, 13\ns_lshl_b32 s39, s{C}, 9\ns_add_u32 s38, s38, s39\ns_add_u32 s38, s38, {S_OFF}")
    a(f"buffer_store_dwordx4 v[28:31], v20, s[{WS}:{WS+3}], s38 offen sc1")
    P.stamp(5)
    VS = 160
    def s_loads():
        a(f"s_lshl_b32 s38, s{C}, 9\ns_add_u32 s38, s38, {S_OFF}")
        for j in range(15):
            a(f"buffer_load_dwordx4 {vr(VS+4*j,4)}, v20, s[{WS}:{WS+3}], s38 offen sc1")
            a("s_add_u32 s38, s38, 8192")
    for k in range(3): a(f"s_barrier                ; P_{k}")
    s_loads()
    for k in range(3, 6): a(f"s_barrier                ; P_{k}")
    a(f"s_mov_b32 s65, {SPIN}")
    a("L_scheck:")
    a("s_waitcnt vmcnt(0)")
    a("s_mov_b64 s[58:59], 0")
    for j in range(15):
        a(f"s_cmp_gt_u32 s{R}, {j}\ns_cbranch_scc0 L_schk_done")
        a(f"v_cmp_ne_u32 vcc, s{NON}, v{VS+4*j+2}\ns_or_b64 s[58:59], s[58:59], vcc")
    a("L_schk_done:")
    a("s_cmp_eq_u64 s[58:59], 0\ns_cbranch_scc1 L_sok")
    a("s_sub_u32 s65, s65, 1\ns_cmp_eq_u32 s65, 0\ns_cbranch_scc1 L_sok")
    a("s_sleep 2")
    s_loads()
    a("s_branch L_scheck")
    a("L_sok:")
    P.stamp(6)
    a("s_barrier                ; P_6")
    a("v_mov_b32 v24, 0\nv_mov_b32 v25, 0")
    for j in range(15):
        a(f"s_cmp_gt_u32 s{R}, {j}\ns_cbranch_scc0 L_hdone")
        cfma_new(a, 28, 29, vl128r, vl128i, 24, 25, VS+4*j, VS+4*j+1)
        a("v_mov_b32 v24, v28\nv_mov_b32 v25, v29")
    a("L_hdone:")
    a("s_barrier                ; P_7")
    cur, nxt = (24, 25), (28, 29)
    for s in range(16):
        a(f"ds_write_b64 v21, v[{cur[0]}:{cur[1]}] offset:{256*s}")
        if s < 15:
            cfma_new(a, nxt[0], nxt[1], vl8r, vl8i, cur[0], cur[1], VE+2*s, VE+2*s+1)
            cur, nxt = nxt, cur
    a("s_waitcnt lgkmcnt(0)")
    a("s_barrier                ; P_8")
    P.stamp(7)
    a("s_barrier                ; B_H")
    a("s_mov_b32 s64, 35\nL_hrest:\ns_barrier\ns_sub_u32 s64, s64, 1\ns_cmp_lg_u32 s64, 0\ns_cbranch_scc1 L_hrest")
    P.flush(9, 2, W, WS, 4, 0)
    a("s_endpgm")

    a("L_consumer:")
    SP = 44
    ACA, ACB = 16, 48
    F0, F1 = 104, 156
    VXA, VBA, VWA = 2, 4, 225
    VLAM, VKAP, VP = 208, 212, 216
    a("v_and_b32 v13, 15, v0                  ; j\nv_lshrrev_b32 v14, 4, v0               ; G")
    a(f"s_lshl_b32 s38, s{C}, 5\nv_add_u32 v15, s38, v13\nv_lshlrev_b32 v15, 1, v15")
    a("s_waitcnt lgkmcnt(0)")
    PT = F0
    for (p, off) in ((6, 0), (8, 1), (18, 2)):
        srd(a, SP, p, 1024)
        a(f"buffer_load_ushort v{PT+off}, v15, s[{SP}:{SP+3}], 0 offen")
        a(f"buffer_load_ushort v{PT+3+off}, v15, s[{SP}:{SP+3}], 0 offen offset:32")
    srd(a, SP, 22, 3584)
    a(f"s_mul_i32 s38, s{C}, 224\nv_lshlrev_b32 v15, 3, v14\nv_add_u32 v15, s38, v15")
    for fs in range(7): a(f"buffer_load_dwordx2 {vr(ACB+8*fs+4,2)}, v15, s[{SP}:{SP+3}], 0 offen offset:{32*fs}")
    srd(a, WS, 30, WS_BYTES)
    a(f"""
    v_lshrrev_b32 v15, 2, v13
    v_lshlrev_b32 v1, 3, v15
    v_and_b32 v12, 3, v13
    v_add_u32 v1, v1, v12
    s_lshl_b32 s38, s{W}, 5
    v_add_u32 v1, s38, v1
    v_lshlrev_b32 v1, 7, v1
    v_lshrrev_b32 v12, 1, v13
    v_and_b32 v12, 1, v12
    v_lshlrev_b32 v15, 1, v15
    v_or_b32 v12, v12, v15
    """)
    for kk in range(2):
        a(f"v_add_u32 v15, {4*kk}, v14\nv_xor_b32 v15, v15, v12\nv_lshlrev_b32 v15, 4, v15\nv_add_u32 v{VXA+kk}, v1, v15")
    a(f"v_lshlrev_b32 v1, 7, v13\nv_add_u32 v1, {BB}, v1\nv_lshrrev_b32 v12, 1, v13")
    for kk in range(2):
        a(f"v_add_u32 v15, {4*kk}, v14\nv_xor_b32 v15, v15, v12\nv_lshlrev_b32 v15, 4, v15\nv_add_u32 v{VBA+kk}, v1, v15")
    a(f"""
    v_lshrrev_b32 v15, 2, v13
    v_lshlrev_b32 v1, 3, v14
    v_add_u32 v1, v1, v15
    v_lshlrev_b32 v1, 8, v1
    v_add_u32 v1, {WBASE}, v1
    v_and_b32 v12, 1, v13
    v_lshlrev_b32 v12, 3, v12
    v_add_u32 v1, v1, v12
    v_and_b32 v12, 1, v14
    v_lshlrev_b32 v12, 2, v12
    v_or_b32 v12, v12, v15
    v_lshlrev_b32 v12, 1, v12
    v_lshrrev_b32 v15, 1, v13
    v_and_b32 v15, 1, v15
    """)
    for fs in range(7):
        a(f"v_add_u32 v{VWA+fs}, {2*fs}, v15\nv_xor_b32 v{VWA+fs}, v{VWA+fs}, v12\nv_lshlrev_b32 v{VWA+fs}, 4, v{VWA+fs}\nv_add_u32 v{VWA+fs}, v1, v{VWA+fs}")
    for i in range(32): a(f"v_mov_b32 v{ACA+i}, 0")
    a("s_waitcnt vmcnt(0)")
    for ch in range(2):
        param_compute(a, PT+3*ch, PT+3*ch+1, PT+3*ch+2, VLAM+2*ch, VLAM+2*ch+1, VP, (VKAP+2*ch, VKAP+2*ch+1))
    for fs in range(7):
        b = ACB + 8*fs
        a(f"v_lshlrev_b32 v{b}, 16, v{b+4}\nv_and_b32 v{b+1}, 0xffff0000, v{b+4}\nv_lshlrev_b32 v{b+2}, 16, v{b+5}\nv_and_b32 v{b+3}, 0xffff0000, v{b+5}")
        a(f"v_mov_b32 v{b+4}, v{b}\nv_mov_b32 v{b+5}, v{b+1}\nv_mov_b32 v{b+6}, v{b+2}\nv_mov_b32 v{b+7}, v{b+3}")
    P.stamp(1)
    def read_list(fset, slot, kk):
        L = []
        for mt in range(2): L.append((('x', mt), f"ds_read_b128 {vr(fset+4*mt,4)}, v{VXA+kk} offset:{XB + slot*16384 + mt*512}"))
        for fs in range(7):
            for h in range(2):
                L.append((('w', fs, h), f"ds_read_b64_tr_b16 {vr(fset+24+4*fs+2*h,2)}, v{VWA+fs} offset:{slot*16384 + kk*8192 + h*1024}"))
        for s in range(4): L.append((('b', s), f"ds_read_b128 {vr(fset+8+4*s,4)}, v{VBA+kk} offset:{slot*8192 + s*2048}"))
        return L
    def mfma_list(fset):
        L = []
        for fs in range(7):
            for mt in range(2):
                acc = ACB + 8*fs + 4*mt
                L.append(([('x', mt), ('w', fs, 1)], f"v_mfma_f32_16x16x32_bf16 {vr(acc,4)}, {vr(fset+24+4*fs,4)}, {vr(fset+4*mt,4)}, {vr(acc,4)}"))
        for s in range(4):
            for mt in range(2):
                acc = ACA + 16*mt + 4*s
                L.append(([('x', mt), ('b', s)], f"v_mfma_f32_16x16x32_bf16 {vr(acc,4)}, {vr(fset+4*mt,4)}, {vr(fset+8+4*s,4)}, {vr(acc,4)}"))
        return L
    def block(cur_set, pending, nxt_reads):
        mf = mfma_list(cur_set)
        nr = len(nxt_reads)
        per_gap = [0]*len(mf); k = 0; g = 0
        while k < nr:
            n = min(2 if g < 4 else 1, nr-k); per_gap[g] = n; k += n; g += 1
        issued = 0; done_upto = -1; ri = 0
        for gi, (deps, txt) in enumerate(mf):
            if pending:
                need = max(pending.index(d) for d in deps)
                if need > done_upto:
                    n = (len(pending) - 1 - need) + issued
                    a(f"s_waitcnt lgkmcnt({min(n,15)})"); done_upto = need
            a(txt)
            for _ in range(per_gap[gi]):
                a(nxt_reads[ri][1]); ri += 1; issued += 1
    a("s_barrier                ; B_0")
    P.stamp(2)
    r0 = read_list(F0, 0, 0)
    for _, t in r0: a(t)
    pending = [k for k, _ in r0]
    for i in range(8):
        s = i % 3
        block(F0, pending, read_list(F1, s, 1))
        a(f"s_waitcnt lgkmcnt(0)\ns_barrier                ; B_{i+1}")
        if i < 7:
            rn = read_list(F0, (i+1) % 3, 0)
            block(F1, None, rn)
            pending = [k for k, _ in rn]
        else:
            block(F1, None, [])
    P.stamp(3)
    a(f"v_mov_b32 v1, {NONCE_LDS}\nds_read_b32 v12, v1")
    a(f"s_mov_b32 s46, {LOG2E}\ns_mov_b32 s47, {LOG2E}")
    a(f"s_lshl_b32 s38, s{R}, 2\ns_add_u32 s38, s38, s{W}\ns_mul_i32 s49, s38, {KS}      ; (4r+m)*176")
    a(f"s_mul_i32 s39, s{C}, 7\ns_add_u32 s48, s49, s39\ns_lshl_b32 s48, s48, 10")
    a("v_lshlrev_b32 v15, 4, v0               ; lane*16")
    a(f"s_waitcnt lgkmcnt(0)\nv_readfirstlane_b32 s{NON}, v12")
    TM = F0
    for fs in range(7):
        b = ACB + 8*fs
        T_, E_, A_ = TM, TM+8, TM+16
        for p in range(4): a(f"v_pk_mul_f32 {vr(T_+2*p,2)}, {vr(b+2*p,2)}, s[46:47]")
        for p in range(8): a(f"v_exp_f32 v{E_+p}, v{T_+p}")
        for p in range(4): a(f"v_pk_add_f32 {vr(A_+2*p,2)}, {vr(E_+2*p,2)}, 2.0 op_sel_hi:[1,0]")
        for p in range(4): a(f"v_pk_fma_f32 {vr(A_+2*p,2)}, {vr(E_+2*p,2)}, {vr(A_+2*p,2)}, 2.0 op_sel_hi:[1,1,0]")
        for p in range(8): a(f"v_rcp_f32 v{T_+p}, v{A_+p}")
        for p in range(4): a(f"v_pk_fma_f32 {vr(T_+2*p,2)}, {vr(T_+2*p,2)}, -2.0, 1.0 op_sel_hi:[1,0,0]")
        for p in range(4): a(f"v_pk_mul_f32 {vr(T_+2*p,2)}, {vr(b+2*p,2)}, {vr(T_+2*p,2)}")
        O_ = TM + 24 + 4*(fs & 1)
        for p in range(4): a(f"v_cvt_pk_bf16_f32 v{O_+p}, v{T_+2*p}, v{T_+2*p+1}")
        a("s_nop 1")
        a(f"v_permlane16_swap_b32 v{O_}, v{O_+2}\nv_permlane16_swap_b32 v{O_+1}, v{O_+3}")
        a(f"buffer_store_dwordx4 {vr(O_,4)}, v15, s[{WS}:{WS+3}], s48 offen sc1")
        a("s_add_u32 s48, s48, 1024")
    P.stamp(4)
    def raw(sc, u, im): return ACA + 16*(u >> 2) + 4*(sc + 2*im) + (u & 3)
    for u in range(8):
        for sc in range(2):
            br, bi = raw(sc,u,0), raw(sc,u,1); kr, ki = VKAP+2*sc, VKAP+2*sc+1
            t = VP + 2*sc
            a(f"v_mul_f32 v{t}, v{kr}, v{br}\nv_mul_f32 v{t+1}, v{kr}, v{bi}")
            a(f"v_fma_f32 v{t}, -v{ki}, v{bi}, v{t}\nv_fma_f32 v{bi}, v{ki}, v{br}, v{t+1}\nv_mov_b32 v{br}, v{t}")
    VE = VP
    cur = [(raw(0,0,0), raw(0,0,1)), (raw(1,0,0), raw(1,0,1))]
    for u in range(1, 8):
        for sc in range(2):
            n = (VE + 4*sc + 2*(u & 1), VE + 4*sc + 2*(u & 1) + 1)
            cfma_new(a, n[0], n[1], VLAM+2*sc, VLAM+2*sc+1, cur[sc][0], cur[sc][1], raw(sc,u,0), raw(sc,u,1))
            cur[sc] = n
    VSEG = 11
    a(f"s_lshl_b32 s38, s{W}, 2\nv_add_u32 v1, s38, v14\nv_lshlrev_b32 v1, 8, v1\nv_lshlrev_b32 v12, 3, v13\nv_add_u32 v1, v1, v12\nv_add_u32 v{VSEG}, {E_LDS}, v1")
    a(f"ds_write_b64 v{VSEG}, v[{cur[0][0]}:{cur[0][1]}]\nds_write_b64 v{VSEG}, v[{cur[1][0]}:{cur[1][1]}] offset:128")
    a(f"s_lshl_b32 s38, s{R}, 2\ns_add_u32 s38, s38, s{W}\ns_lshl_b32 s50, s38, 6\ns_lshl_b32 s39, s{C}, 2\ns_add_u32 s50, s50, s39")
    a(f"v_mov_b32 v9, s{NON}\nv_mov_b32 v10, 0")
    a(f"s_add_u32 s51, s50, {FA_OFF}")
    a("s_waitcnt vmcnt(0)")
    a("s_mov_b64 s[52:53], exec\ns_mov_b64 exec, 1")
    a(f"buffer_store_dword v9, v10, s[{WS}:{WS+3}], s51 offen sc1")
    a("s_mov_b64 exec, s[52:53]")
    P.stamp(5)
    a("s_waitcnt lgkmcnt(0)\ns_barrier                ; B_E")
    ACC_B, ACC_A = 48, 64
    G0, G1 = 80, 112
    VX, VG, VD, VO = 144, 160, 176, 177
    VA0, VBW0, VBC0 = 178, 179, 180
    VA, VBW, VBC = 184, 185, 186
    SX2, SD, SO = 44, 56, 60
    srd(a, SX2, 4, 2048*512*2); srd(a, SD, 96, 1024); srd(a, SO, 98, 2048*512*4)
    a(f"s_lshr_b32 s35, s{W}, 1              ; a\ns_and_b32 s36, s{W}, 1              ; b")
    a(f"s_lshl_b32 s37, s35, 12\nv_add_u32 v{VA0}, s37, v15        ; lane*16 + 4096a")
    a(f"""
    v_lshrrev_b32 v1, 1, v14
    v_lshlrev_b32 v1, 3, v1
    v_lshrrev_b32 v12, 2, v13
    v_add_u32 v1, v1, v12
    v_lshlrev_b32 v1, 7, v1
    v_and_b32 v12, 1, v14
    v_lshlrev_b32 v12, 1, v12
    s_lshl_b32 s37, s36, 2
    v_add_u32 v12, s37, v12
    v_lshrrev_b32 v9, 1, v13
    v_and_b32 v9, 1, v9
    v_add_u32 v12, v12, v9
    v_lshrrev_b32 v9, 3, v13
    v_lshlrev_b32 v9, 2, v9
    v_xor_b32 v12, v12, v9
    v_lshlrev_b32 v12, 4, v12
    v_add_u32 v1, v1, v12
    v_and_b32 v12, 1, v13
    v_lshlrev_b32 v12, 3, v12
    v_add_u32 v1, v1, v12
    v_add_u32 v{VBW0}, 8192, v1
    """)
    a(f"""
    v_and_b32 v1, 31, v0
    s_lshl_b32 s37, s36, 5
    v_add_u32 v12, s37, v1
    v_lshlrev_b32 v12, 7, v12
    v_add_u32 v12, 8192, v12
    v_lshrrev_b32 v9, 1, v1
    v_and_b32 v9, 7, v9
    v_lshrrev_b32 v10, 5, v0
    """)
    for kk in range(4):
        a(f"v_add_u32 v8, {2*kk}, v10\nv_xor_b32 v8, v8, v9\nv_lshlrev_b32 v8, 4, v8\nv_add_u32 v{VBC0+kk}, v12, v8")
    a(f"s_lshl_b32 s38, s{R}, 7\ns_and_b32 s39, s{C}, 1\ns_lshl_b32 s39, s39, 6\ns_add_u32 s38, s38, s39\ns_lshl_b32 s39, s35, 5\ns_add_u32 s38, s38, s39      ; row0")
    a(f"s_lshr_b32 s39, s{C}, 1\ns_lshl_b32 s39, s39, 6\ns_lshl_b32 s37, s36, 5\ns_add_u32 s39, s39, s37      ; d0")
    a("v_add_u32 v4, s39, v1                 ; d\nv_lshlrev_b32 v5, 3, v10\nv_add_u32 v5, s38, v5      ; row0+8hh")
    a(f"v_lshlrev_b32 v6, 10, v5\nv_lshlrev_b32 v7, 1, v4\nv_add_u32 v6, v6, v7")
    for q in range(4):
        a(f"s_mov_b32 s67, {(16*(q&1)+4*(q>>1))*1024}")
        for r_ in range(4):
            a(f"buffer_load_ushort v{VX+4*q+r_}, v6, s[{SX2}:{SX2+3}], s67 offen offset:{r_*1024}")
    a(f"buffer_load_ushort v{VD}, v7, s[{SD}:{SD+3}], 0 offen")
    a(f"v_lshlrev_b32 v{VO}, 11, v5\nv_lshlrev_b32 v7, 2, v4\nv_add_u32 v{VO}, v{VO}, v7")
    VGA = 190
    a(f"v_lshlrev_b32 v{VGA}, 2, v5")
    for i in range(32): a(f"v_mov_b32 v{ACC_B+i}, 0")
    SL = 54
    a(f"s_mov_b32 s{SL}, 0")
    def set_addr(kind):
        a(f"v_add_u32 v{VA}, s{SL}, v{VA0}")
        if kind == 'w': a(f"v_add_u32 v{VBW}, s{SL}, v{VBW0}")
        else:
            for kk in range(4): a(f"v_add_u32 v{VBC+kk}, s{SL}, v{VBC0+kk}")
    def adv():
        a(f"s_add_u32 s{SL}, s{SL}, 16384\ns_cmp_ge_u32 s{SL}, {NS*16384}\ns_cselect_b32 s38, {NS*16384}, 0\ns_sub_u32 s{SL}, s{SL}, s38")
    def reads2(fs, kind):
        for kk in range(4):
            a(f"ds_read_b128 {vr(fs+4*kk,4)}, v{VA} offset:{1024*kk}")
            if kind == 'w':
                a(f"ds_read_b64_tr_b16 {vr(fs+16+4*kk,2)}, v{VBW} offset:{2048*kk}")
                a(f"ds_read_b64_tr_b16 {vr(fs+16+4*kk+2,2)}, v{VBW} offset:{2048*kk+512}")
            else:
                a(f"ds_read_b128 {vr(fs+16+4*kk,4)}, v{VBC+kk}")
    def mfmas2(fs, acc):
        for kk in range(4):
            a(f"v_mfma_f32_32x32x16_bf16 {vr(acc,16)}, {vr(fs+4*kk,4)}, {vr(fs+16+4*kk,4)}, {vr(acc,16)}")
    def step(cur, nxt, acc, kind):
        a("s_waitcnt lgkmcnt(0)\ns_barrier")
        adv(); set_addr(kind); reads2(nxt, kind); mfmas2(cur, acc)
    a("s_barrier                ; P_0")
    P.stamp(6)
    set_addr('w'); reads2(G0, 'w')
    a("s_mov_b32 s55, 0")
    a("L_c1:")
    step(G0, G1, ACC_B, 'w'); step(G1, G0, ACC_B, 'w')
    a("s_add_u32 s55, s55, 1")
    a("s_cmp_eq_u32 s55, 4\ns_cbranch_scc1 L_hookH")
    a("s_cmp_eq_u32 s55, 6\ns_cbranch_scc1 L_hookF")
    a("L_c1_cont:")
    a("s_cmp_lt_u32 s55, 13\ns_cbranch_scc1 L_c1")
    step(G0, G1, ACC_B, 'w')
    step(G1, G0, ACC_B, 'c')
    a(f"s_mov_b32 s66, {G_OFF}")
    for q in range(4):
        a(f"buffer_load_dwordx4 {vr(VG+4*q,4)}, v{VGA}, s[{WS}:{WS+3}], s66 offen offset:{(16*(q&1)+4*(q>>1))*4} sc1")
    a("s_mov_b32 s55, 7")
    a("L_c2:")
    step(G0, G1, ACC_A, 'c'); step(G1, G0, ACC_A, 'c')
    a("s_sub_u32 s55, s55, 1\ns_cmp_lg_u32 s55, 0\ns_cbranch_scc1 L_c2")
    step(G0, G1, ACC_A, 'c')
    a("s_waitcnt lgkmcnt(0)")
    mfmas2(G1, ACC_A)
    P.stamp(8)
    a("s_waitcnt vmcnt(0)")
    a(f"v_lshlrev_b32 v{VD}, 16, v{VD}")
    for i in range(16): a(f"v_lshlrev_b32 v{VX+i}, 16, v{VX+i}")
    a("s_nop 7")
    for r_ in range(16):
        a(f"v_fma_f32 v{ACC_A+r_}, v{VX+r_}, v{VD}, v{ACC_A+r_}")
        a(f"v_sub_f32 v{ACC_A+r_}, v{ACC_A+r_}, v{ACC_B+r_}")
        a(f"v_fma_f32 v{ACC_A+r_}, v{VG+r_}, v{ACC_A+r_}, v{ACC_B+r_}")
    for r_ in range(16):
        t = 16*((r_ >> 2) & 1) + 4*(r_ >> 3) + (r_ & 3)
        if (r_ & 1) == 0: a(f"s_mov_b32 s67, {t*2048}")
        a(f"buffer_store_dword v{ACC_A+r_}, v{VO}, s[{SO}:{SO+3}], s67 offen offset:{(r_&1)*2048}")
    P.stamp(9)
    P.flush(10, 2, W, WS, 4, 0)
    a("s_endpgm")
    a("L_hookH:")
    a("s_barrier                ; B_H")
    HT = 192
    a(f"ds_read_b64 {vr(HT,2)}, v{VSEG}\nds_read_b64 {vr(HT+2,2)}, v{VSEG} offset:128")
    a(f"s_mul_i32 s38, s{W}, {TR_WAVE}\ns_add_u32 s38, s38, {TR_LDS}")
    a(f"v_mul_u32_u24 v8, {TR_STRIDE}, v13\nv_lshlrev_b32 v9, 3, v14\nv_add_u32 v8, v8, v9\nv_add_u32 v8, s38, v8")
    a(f"""
    v_lshrrev_b32 v9, 5, v0
    v_lshlrev_b32 v9, 3, v9
    v_lshrrev_b32 v10, 2, v13
    v_add_u32 v9, v9, v10
    v_mul_u32_u24 v9, {TR_STRIDE}, v9
    v_and_b32 v10, 1, v14
    v_lshlrev_b32 v10, 5, v10
    v_add_u32 v9, v9, v10
    v_and_b32 v10, 3, v13
    v_lshlrev_b32 v10, 3, v10
    v_add_u32 v9, v9, v10
    v_add_u32 v9, s38, v9
    """)
    a("s_waitcnt lgkmcnt(0)")
    prev = [(HT, HT+1), (HT+2, HT+3)]
    for u in range(8):
        for sc in range(2):
            br, bi = raw(sc,u,0), raw(sc,u,1); lr, li = VLAM+2*sc, VLAM+2*sc+1; hr, hi = prev[sc]
            a(f"v_fma_f32 v{br}, v{lr}, v{hr}, v{br}\nv_fma_f32 v{bi}, v{lr}, v{hi}, v{bi}")
            a(f"v_fma_f32 v{br}, -v{li}, v{hi}, v{br}\nv_fma_f32 v{bi}, v{li}, v{hr}, v{bi}")
            prev[sc] = (br, bi)
    a(f"s_lshr_b32 s38, s{C}, 1\ns_lshl_b32 s38, s38, 3\ns_and_b32 s39, s{C}, 1\ns_lshl_b32 s39, s39, 1\ns_add_u32 s38, s38, s39\ns_add_u32 s38, s38, 112\ns_add_u32 s48, s49, s38\ns_lshl_b32 s48, s48, 10")
    for part in range(2):
        neg = "-" if part else ""
        for sc in range(2):
            for mt in range(2):
                src = ACA + 16*mt + 4*(sc + 2*part); d = HT + 2*(2*sc+mt)
                a(f"v_cvt_pk_bf16_f32 v{d}, {neg}v{src}, {neg}v{src+1}\nv_cvt_pk_bf16_f32 v{d+1}, {neg}v{src+2}, {neg}v{src+3}")
                a(f"ds_write_b64 v8, {vr(d,2)} offset:{sc*16*TR_STRIDE + 32*mt}")
        a("s_waitcnt lgkmcnt(0)")
        for sc in range(2):
            for h in range(2):
                a(f"ds_read_b64_tr_b16 {vr(HT+8+4*sc+2*h,2)}, v9 offset:{sc*16*TR_STRIDE + h*4*TR_STRIDE}")
        a("s_waitcnt lgkmcnt(0)")
        for sc in range(2):
            a(f"buffer_store_dwordx4 {vr(HT+8+4*sc,4)}, v15, s[{WS}:{WS+3}], s48 offen offset:{1024*sc} sc1")
        if part == 0: a("s_add_u32 s48, s48, 4096\ns_nop 1")
    P.stamp(7)
    a("s_branch L_c1_cont")
    a("L_hookF:")
    a(f"s_add_u32 s51, s50, {FH_OFF}\nv_mov_b32 v9, s{NON}\nv_mov_b32 v10, 0")
    a("s_waitcnt vmcnt(0)")
    a("s_mov_b64 s[52:53], exec\ns_mov_b64 exec, 1")
    a(f"buffer_store_dword v9, v10, s[{WS}:{WS+3}], s51 offen sc1")
    a("s_mov_b64 exec, s[52:53]")
    a("s_branch L_c1_cont")
    a("L_end:\ns_endpgm")
    return dict(vgpr=232, sgpr=102)

def kd(name, vgpr, sgpr):
    v = (vgpr + 7)//8*8
    return f""".p2align 6
.amdhsa_kernel {name}
  .amdhsa_next_free_vgpr {v}
  .amdhsa_next_free_sgpr {sgpr}
  .amdhsa_accum_offset {v}
  .amdhsa_group_segment_fixed_size 0
  .amdhsa_kernarg_size 136
  .amdhsa_user_sgpr_count 2
  .amdhsa_user_sgpr_kernarg_segment_ptr 1
  .amdhsa_system_sgpr_workgroup_id_x 1
  .amdhsa_float_denorm_mode_32 3
.end_amdhsa_kernel
"""

def header():
    ref = open("cdna_kernels/" + NAME + ".s.ref").read().split("\n")
    out = []
    for l in ref:
        if l.startswith("; @launch") or l.startswith("; Override"): break
        out.append(l)
    return "\n".join(out) + "\n"

def build():
    a = Asm()
    k = NAME + "_kernel"
    hdr = header() + "; @launch grid=(256,1,1) block=(512,1,1) lds=163840\n"
    a('.amdgcn_target "amdgcn-amd-amdhsa--gfx950"\n.text')
    a(f".globl {k}"); i = gen(a, k)
    return hdr + a.text() + '.section .rodata,"a"\n' + kd(k, **i)

if __name__ == "__main__":
    if "--prof" in sys.argv: PROFILE = True
    out = [x for x in sys.argv[1:] if not x.startswith("--")]
    path = out[0] if out else "cdna_kernels/" + NAME + ".s"
    txt = build()
    for p in lint_srd(txt): print("SRD-CLOBBER?", p)
    open(path, "w").write(txt)
    print("wrote", path)
```

```python
import sys
from asmlib import *

NAME = "gated_mix__ssm_conv_s5__dense_activation_mish__prompt"
AH_OFF = 0
G_OFF  = 0xE00000
FA_OFF = 0xE08000
FH_OFF = 0xE0A000
S_OFF  = 0xE10000
PROF_OFF = 0xF00000
WS_BYTES = 0x1000000
KS = 176
LOG2E = 0x3fb8aa3b
INV2PI = 0x3e22f983
PROFILE = False
SPIN = 0x40000
import os
OPT = dict(kv.split('=') for kv in os.environ.get('OPT', '').split(',') if kv)
def opt(k, d): return type(d)(OPT.get(k, d))

XB, BB, WBASE = 0, 49152, 73728
NS = 9
EXT = NS*16384
E_LDS = EXT
NONCE_LDS = EXT + 4096
TR_LDS = EXT + 4352
TR_STRIDE = 72
TR_WAVE = 2*16*TR_STRIDE
assert TR_LDS + 4*TR_WAVE <= 163840

DBGPROF = False
class Prof:
    def __init__(self, a, base=70): self.a, self.base = a, base
    def stamp(self, idx):
        if PROFILE or DBGPROF: self.a(f"s_memtime s[{self.base+2*idx}:{self.base+2*idx+1}]")
    def flush(self, nst, s_id, s_wave, ws_srd, vtmp, vlane):
        if DBGPROF:
            a = self.a
            lbl = a.newlabel("dbgskip")
            a(f"s_cmp_eq_u32 s{s_wave}, 0\ns_cbranch_scc0 {lbl}")
            a("s_memrealtime s[92:93]\ns_waitcnt lgkmcnt(0)")
            a("s_mov_b32 s44, s28\ns_and_b32 s45, s29, 0xffff\ns_mov_b32 s46, 256\ns_mov_b32 s47, 0x20000")
            a(f"s_not_b32 s94, s94\nv_mov_b32 v{vtmp}, s94\nv_mov_b32 v{vtmp+1}, 4\nv_mov_b32 v{vtmp+2}, s92\nv_mov_b32 v{vtmp+3}, 8")
            a("s_mov_b64 exec, 1")
            a(f"buffer_atomic_umax v{vtmp}, v{vtmp+1}, s[44:47], 0 offen")
            a(f"buffer_atomic_umax v{vtmp+2}, v{vtmp+3}, s[44:47], 0 offen")
            a("s_mov_b64 exec, -1")
            a(f"s_cmp_eq_u32 s{s_id}, 100\ns_cbranch_scc0 {lbl}")
            a(f"v_mov_b32 v{vtmp}, 0")
            for i in range(nst):
                a(f"s_sub_u32 s66, s{self.base+2*i}, s{self.base}\nv_mov_b32 v{vtmp+1}, s66")
                a(f"v_cmp_eq_u32 vcc, {i}, v{vlane}\ns_nop 1\nv_cndmask_b32 v{vtmp}, v{vtmp}, v{vtmp+1}, vcc")
            a(f"v_lshlrev_b32 v{vtmp+1}, 2, v{vlane}\nv_cmp_gt_u32 vcc, {nst}, v{vlane}\ns_and_saveexec_b64 s[66:67], vcc")
            a(f"buffer_store_dword v{vtmp}, v{vtmp+1}, s[44:47], 0 offen offset:16")
            a("s_mov_b64 exec, s[66:67]")
            a(f"{lbl}:")
            return
        if not PROFILE: return
        a = self.a
        a(f"s_memrealtime s[{self.base+2*nst}:{self.base+2*nst+1}]")
        a("s_waitcnt lgkmcnt(0)")
        a(f"s_lshl_b32 s68, s{s_id}, 3\ns_add_u32 s68, s68, s{s_wave}\ns_lshl_b32 s68, s68, 6\ns_add_u32 s68, s68, {PROF_OFF}")
        a(f"v_mov_b32 v{vtmp}, 0")
        for i in range(nst+1):
            a(f"v_mov_b32 v{vtmp+1}, s{self.base+2*i}")
            a(f"v_cmp_eq_u32 vcc, {i}, v{vlane}\ns_nop 1\nv_cndmask_b32 v{vtmp}, v{vtmp}, v{vtmp+1}, vcc")
        a(f"v_lshlrev_b32 v{vtmp+1}, 2, v{vlane}")
        a(f"v_cmp_gt_u32 vcc, 16, v{vlane}\ns_and_saveexec_b64 s[66:67], vcc")
        a(f"buffer_store_dword v{vtmp}, v{vtmp+1}, s[{ws_srd}:{ws_srd+3}], s68 offen")
        a("s_mov_b64 exec, s[66:67]")

def param_compute(a, vLre, vLim, vldt, vlr, vli, t, want_coef=None, scale2=False):
    a(f"""
    v_lshlrev_b32 v{vLre}, 16, v{vLre}
    v_lshlrev_b32 v{vLim}, 16, v{vLim}
    v_lshlrev_b32 v{vldt}, 16, v{vldt}
    v_mul_f32 v{t}, {LOG2E}, v{vldt}
    v_exp_f32 v{t}, v{t}
    s_nop 1
    v_cvt_pk_bf16_f32 v{t}, v{t}, v{t}
    v_lshlrev_b32 v{t}, 16, v{t}
    v_mul_f32 v{t+1}, v{t}, v{vLre}
    v_mul_f32 v{t+2}, v{t}, v{vLim}
    v_mul_f32 v{t+1}, {LOG2E}, v{t+1}
    v_exp_f32 v{t+1}, v{t+1}
    v_mul_f32 v{t+2}, {INV2PI}, v{t+2}
    v_rndne_f32 v{t+3}, v{t+2}
    v_sub_f32 v{t+2}, v{t+2}, v{t+3}
    v_cos_f32 v{t+3}, v{t+2}
    v_sin_f32 v{t+4}, v{t+2}
    s_nop 1
    v_mul_f32 v{vlr}, v{t+1}, v{t+3}
    v_mul_f32 v{vli}, v{t+1}, v{t+4}
    """)
    if want_coef:
        cr, ci = want_coef
        a(f"""
        v_add_f32 v{t}, -1.0, v{vlr}
        v_mul_f32 v{t+1}, v{vLre}, v{vLre}
        v_fma_f32 v{t+1}, v{vLim}, v{vLim}, v{t+1}
        v_rcp_f32 v{t+1}, v{t+1}
        v_mul_f32 v{t+2}, v{t}, v{vLre}
        v_fma_f32 v{t+2}, v{vli}, v{vLim}, v{t+2}
        v_mul_f32 v{t+3}, v{vli}, v{vLre}
        v_fma_f32 v{t+3}, -v{t}, v{vLim}, v{t+3}
        v_add_f32 v{t+1}, v{t+1}, v{t+1}
        v_mul_f32 v{cr}, v{t+2}, v{t+1}
        v_mul_f32 v{ci}, v{t+3}, v{t+1}
        """)

def csquare(a, dr, di, sr_, si, t):
    a(f"v_mul_f32 v{t}, v{si}, v{si}\nv_mul_f32 v{t+1}, v{sr_}, v{si}\nv_fma_f32 v{dr}, v{sr_}, v{sr_}, -v{t}\nv_add_f32 v{di}, v{t+1}, v{t+1}")

def cfma_new(a, nr, ni, lr, li, hr, hi, br, bi):
    a(f"v_fma_f32 v{nr}, v{lr}, v{hr}, v{br}\nv_fma_f32 v{ni}, v{lr}, v{hi}, v{bi}")
    a(f"v_fma_f32 v{nr}, -v{li}, v{hi}, v{nr}\nv_fma_f32 v{ni}, v{li}, v{hr}, v{ni}")

def poll_flags(a, lbl, vaddr, vtmp, srd_, soff, s_nonce, nlanes_mask_sgpr):
    a(f"s_mov_b32 s65, {SPIN}")
    a(f"s_mov_b64 exec, s[{nlanes_mask_sgpr}:{nlanes_mask_sgpr+1}]")
    a(f"{lbl}:")
    a(f"buffer_load_dword v{vtmp}, v{vaddr}, s[{srd_}:{srd_+3}], s{soff} offen sc1")
    a(f"s_waitcnt vmcnt(0)")
    a(f"v_cmp_ne_u32 vcc, s{s_nonce}, v{vtmp}")
    a(f"s_cbranch_vccz {lbl}_ok")
    a(f"s_sleep {opt('psleep', 1)}\ns_sub_u32 s65, s65, 1\ns_cmp_lg_u32 s65, 0\ns_cbranch_scc1 {lbl}")
    a(f"{lbl}_ok:")
    a("s_mov_b64 exec, -1")

def gen(a, kname):
    P = Prof(a)
    a(f".p2align 8\n.type {kname},@function\n{kname}:")
    a("s_cmp_ge_u32 s2, 256\ns_cbranch_scc1 L_end")
    P.stamp(0)
    if DBGPROF: a("s_memrealtime s[94:95]")
    a("s_load_dwordx4 s[4:7], s[0:1], 0       ; x, Lre")
    a("s_load_dwordx4 s[8:11], s[0:1], 16")
    a("s_load_dwordx4 s[12:15], s[0:1], 32")
    a("s_load_dwordx4 s[16:19], s[0:1], 48")
    a("s_load_dwordx4 s[20:23], s[0:1], 80    ; w1, b1")
    a("s_load_dwordx4 s[24:27], s[0:1], 96    ; w2, gate_w")
    a("s_load_dwordx4 s[28:31], s[0:1], 120")
    a("s_load_dwordx2 s[96:97], s[0:1], 64    ; Dskip")
    a("s_load_dwordx2 s[98:99], s[0:1], 112   ; out")
    R, C, W, T = 32, 33, 34, 35
    NON = 69
    a(f"""
    s_and_b32 s{T}, s2, 7
    s_lshr_b32 s{T+1}, s2, 3
    s_lshr_b32 s{R}, s{T}, 1
    s_lshl_b32 s{R}, s{R}, 2
    s_lshr_b32 s{C}, s{T+1}, 3
    s_add_u32 s{R}, s{R}, s{C}
    s_and_b32 s{C}, s{T}, 1
    s_lshl_b32 s{C}, s{C}, 3
    s_and_b32 s{T+1}, s{T+1}, 7
    s_add_u32 s{C}, s{C}, s{T+1}
    v_lshrrev_b32 v1, 6, v0
    v_and_b32 v0, 63, v0
    v_readfirstlane_b32 s{W}, v1
    """)
    a(f"s_cmp_ge_u32 s{W}, 4\ns_cbranch_scc0 L_consumer")
    WS = 40
    SX, SB, SW, SP = 44, 48, 52, 56
    LW = 37
    VDX, VDB, VDW = 4, 8, 124
    OX, OB, OW = 60, 61, 62
    a(f"s_sub_u32 s{LW}, s{W}, 4")
    a("v_lshrrev_b32 v12, 3, v0              ; l>>3\nv_and_b32 v13, 7, v0\nv_lshrrev_b32 v14, 4, v0              ; l>>4")
    a(f"s_lshl_b32 s38, s{LW}, 5             ; 32*lw")
    for j in range(4):
        a(f"v_and_b32 v15, 1, v14\nv_or_b32 v15, {j<<1}, v15\nv_xor_b32 v15, v13, v15\nv_lshlrev_b32 v15, 4, v15")
        a(f"v_add_u32 v16, s38, v12\nv_add_u32 v16, {8*j}, v16\nv_lshlrev_b32 v16, 10, v16")
        a(f"v_add_u32 v16, v16, v15\nv_subrev_u32 v{VDX+j}, {1024*j}, v16")
    a(f"s_lshl_b32 s{OX}, s{R}, 17\ns_lshl_b32 s63, s{LW}, 12\ns_lshl_b32 s64, s{LW}, 11")
    a("s_waitcnt lgkmcnt(0)")
    srd(a, SX, 4, 2048*512*2)
    def issue_x(slot):
        a(f"s_add_u32 m0, s63, {XB + slot*16384}\ns_nop 0")
        for j in range(4): a(f"buffer_load_dwordx4 v{VDX+j}, s[{SX}:{SX+3}], s{OX} offen offset:{1024*j} lds")
        a(f"s_add_u32 s{OX}, s{OX}, 128")
    def issue_b(slot):
        a(f"s_add_u32 m0, s64, {BB + slot*8192}\ns_nop 0")
        for j in range(2): a(f"buffer_load_dwordx4 v{VDB+j}, s[{SB}:{SB+3}], s{OB} offen offset:{1024*j} lds")
        a(f"s_add_u32 s{OB}, s{OB}, 128")
    def issue_w(slot):
        a(f"s_add_u32 m0, s63, {WBASE + slot*16384}\ns_nop 0")
        for j in range(4): a(f"buffer_load_dwordx4 v{VDW+j}, s[{SW}:{SW+3}], s{OW} offen offset:{1024*j} lds")
        a(f"s_add_u32 s{OW}, s{OW}, {64*3584}")
    issue_x(0)
    a(f"s_lshl_b32 s38, s{LW}, 4\nv_and_b32 v13, 15, v0\ns_mov_b32 s39, 3584")
    for j in range(4):
        a(f"v_or_b32 v15, {(j>>1)<<2}, v14\nv_lshlrev_b32 v15, 1, v15\nv_xor_b32 v15, v13, v15")
        a(f"v_add_u32 v16, s38, v14\nv_add_u32 v16, {4*j}, v16\nv_mul_lo_u32 v16, v16, s39")
        a(f"v_lshlrev_b32 v17, 4, v15\nv_add_u32 v16, v16, v17\nv_subrev_u32 v16, {1024*j}, v16")
        a(f"v_mov_b32 v17, 0x7ff00000\nv_cmp_gt_u32 vcc, 14, v15\ns_nop 1\nv_cndmask_b32 v{VDW+j}, v17, v16, vcc")
    srd(a, SW, 20, 512*1792*2)
    a(f"s_mul_i32 s{OW}, s{C}, 224")
    issue_w(0)
    a(f"v_and_b32 v13, 7, v0\ns_and_b32 s38, s{LW}, 1\ns_lshl_b32 s38, s38, 4")
    for j in range(2):
        a(f"v_add_u32 v15, {4*j}, v14\nv_and_b32 v15, 7, v15\nv_xor_b32 v15, v13, v15\nv_lshlrev_b32 v15, 4, v15")
        a(f"v_add_u32 v16, s38, v12\nv_add_u32 v16, {8*j}, v16\nv_lshlrev_b32 v16, 10, v16")
        a(f"v_add_u32 v16, v16, v15\nv_subrev_u32 v{VDB+j}, {1024*j}, v16")
    a(f"s_cmp_ge_u32 s{LW}, 2\ns_cselect_b32 s38, s12, s10\ns_cselect_b32 s39, s13, s11")
    srd(a, SB, 38, 512*512*2)
    a(f"s_lshl_b32 s{OB}, s{C}, 15")
    issue_b(0)
    for k in (1, 2): issue_x(k); issue_w(k); issue_b(k)
    P.stamp(1)
    srd(a, WS, 30, WS_BYTES)
    DB = 84
    srd(a, DB, 28, 256)
    a(f"s_cmp_eq_u32 s2, 0\ns_cbranch_scc0 L_nononce\ns_cmp_eq_u32 s{LW}, 3\ns_cbranch_scc0 L_nononce")
    a("s_memrealtime s[38:39]\ns_waitcnt lgkmcnt(0)\ns_or_b32 s38, s38, 1\nv_mov_b32 v20, s38\nv_mov_b32 v21, 0")
    a(f"buffer_store_dword v20, v21, s[{DB}:{DB+3}], 0 offen sc1")
    a("L_nononce:")
    a("s_waitcnt vmcnt(20)\ns_barrier                ; B_0")
    P.stamp(2)
    vLre, vLim, vldt = 40, 41, 42
    vlr, vli, vl8r, vl8i, vl128r, vl128i = 44, 45, 48, 49, 50, 51
    for k in range(1, 8):
        n = 10 if k <= 6 else 0
        if k == 6:
            a(f"s_waitcnt vmcnt({10 + 12})")
        elif k == 7:
            a("s_waitcnt vmcnt(12)")
        else:
            a(f"s_waitcnt vmcnt({n})")
        a(f"s_barrier                ; B_{k}")
        if k + 2 <= 7:
            s = (k+2) % 3
            issue_x(s); issue_w(s); issue_b(s)
        if k == 5:
            a(f"v_and_b32 v2, 31, v0\ns_lshl_b32 s38, s{C}, 5\nv_add_u32 v2, s38, v2\nv_lshlrev_b32 v2, 1, v2")
            srd(a, SP, 6, 1024);  a(f"buffer_load_ushort v{vLre}, v2, s[{SP}:{SP+3}], 0 offen")
            srd(a, SP, 8, 1024);  a(f"buffer_load_ushort v{vLim}, v2, s[{SP}:{SP+3}], 0 offen")
            srd(a, SP, 18, 1024); a(f"buffer_load_ushort v{vldt}, v2, s[{SP}:{SP+3}], 0 offen")
            srd(a, SP, 26, 1024)
            a(f"v_lshlrev_b32 v3, 4, v0\nbuffer_load_dwordx4 v[60:63], v3, s[{SP}:{SP+3}], 0 offen")
            a(f"s_lshl_b32 s38, s{R}, 7\ns_lshl_b32 s39, s{C}, 3\ns_add_u32 s38, s38, s39\ns_lshl_b32 s38, s38, 10")
            for i in range(8):
                a(f"buffer_load_dwordx4 {vr(64+4*i,4)}, v3, s[{SX}:{SX+3}], s38 offen")
                a("s_add_u32 s38, s38, 1024")
    P.stamp(3)
    a("v_mov_b32 v21, 0\ns_mov_b32 s65, %d" % SPIN)
    a("L_npoll:")
    a(f"buffer_load_dword v20, v21, s[{DB}:{DB+3}], 0 offen sc1\ns_waitcnt vmcnt(0)\nv_readfirstlane_b32 s{NON}, v20\ns_cmp_lg_u32 s{NON}, 0\ns_cbranch_scc1 L_npoll_ok")
    a("s_sleep 4\ns_sub_u32 s65, s65, 1\ns_cmp_lg_u32 s65, 0\ns_cbranch_scc1 L_npoll")
    a("L_npoll_ok:")
    a(f"v_mov_b32 v20, s{NON}\nv_mov_b32 v21, {NONCE_LDS}\nds_write_b32 v21, v20\ns_waitcnt lgkmcnt(0)")
    a("s_barrier                ; B_8")
    a(f"s_cmp_eq_u32 s{LW}, 2\ns_cbranch_scc1 L_bloader\ns_cmp_eq_u32 s{LW}, 3\ns_cbranch_scc1 L_helper")
    a(f"s_cmp_eq_u32 s{LW}, 0\ns_cbranch_scc0 L_nogate")
    for i in range(8):
        a(f"v_mov_b32 v{96+i}, 0")
    for i in range(8):
        for e in range(4): a(f"v_dot2c_f32_bf16 v{96+i}, v{64+4*i+e}, v{60+e}")
    for dpp in ("quad_perm:[1,0,3,2]", "quad_perm:[2,3,0,1]", "row_half_mirror", "row_mirror"):
        a("s_nop 1")
        for i in range(8): a(f"v_add_f32_dpp v{96+i}, v{96+i}, v{96+i} {dpp} row_mask:0xf bank_mask:0xf")
    for sw in ("v_permlane16_swap_b32", "v_permlane32_swap_b32"):
        for i in range(8): a(f"v_mov_b32 v{104+i}, v{96+i}")
        a("s_nop 1")
        for i in range(8): a(f"{sw} v{96+i}, v{104+i}")
        a("s_nop 1")
        for i in range(8): a(f"v_add_f32 v{96+i}, v{96+i}, v{104+i}")
    a("v_mov_b32 v20, v96")
    for i in range(1, 8):
        a(f"v_cmp_eq_u32 vcc, {i}, v0\ns_nop 1\nv_cndmask_b32 v20, v20, v{96+i}, vcc")
    a(f"v_mul_f32 v20, {LOG2E ^ 0x80000000}, v20\nv_exp_f32 v20, v20\ns_nop 0\nv_add_f32 v20, 1.0, v20\nv_rcp_f32 v20, v20")
    a(f"s_lshl_b32 s38, s{R}, 7\ns_lshl_b32 s39, s{C}, 3\ns_add_u32 s38, s38, s39\ns_lshl_b32 s38, s38, 2\ns_add_u32 s38, s38, {G_OFF}")
    a("v_lshlrev_b32 v21, 2, v0\nv_cmp_gt_u32 vcc, 8, v0\ns_and_saveexec_b64 s[66:67], vcc")
    a(f"buffer_store_dword v20, v21, s[{WS}:{WS+3}], s38 offen sc1")
    a("s_mov_b64 exec, s[66:67]\ns_waitcnt vmcnt(0)")
    a("L_nogate:")
    OA, MS = 60, 61
    a(f"s_and_b32 s38, s{C}, 1\ns_lshl_b32 s38, s38, 1\ns_add_u32 s38, s38, s{LW}       ; m")
    a(f"s_lshl_b32 s39, s{R}, 2\ns_add_u32 s39, s39, s38\ns_mul_i32 s{OA}, s39, {KS*1024}")
    a(f"s_lshl_b32 s62, s39, 6")
    a(f"s_lshl_b32 s{MS}, s{LW}, 12")
    a("v_lshlrev_b32 v1, 4, v0\nv_lshlrev_b32 v2, 2, v0")
    a("s_mov_b64 s[58:59], 0xffff")
    a(f"s_add_u32 s63, s62, {FA_OFF}")
    P.stamp(4)
    poll_flags(a, "L_pollA", 2, 20, WS, 63, NON, 58)
    P.stamp(5)
    def issue_a():
        a(f"s_mov_b32 m0, s{MS}")
        a(f"s_add_u32 s{MS}, s{MS}, 16384\ns_cmp_ge_u32 s{MS}, {NS*16384}\ns_cselect_b32 s38, {NS*16384}, 0\ns_sub_u32 s{MS}, s{MS}, s38")
        for j in range(4): a(f"buffer_load_dwordx4 v1, s[{WS}:{WS+3}], s{OA} offen offset:{1024*j} sc1 lds")
        a(f"s_add_u32 s{OA}, s{OA}, 4096")
    for k in range(NS): issue_a()
    a("s_barrier                ; B_E")
    a(f"s_waitcnt vmcnt({4*(NS-1)})\ns_barrier                ; P_0")
    P.stamp(6)
    def aloop(lbl, n):
        a(f"s_mov_b32 s64, {n}\n{lbl}:")
        a(f"s_waitcnt vmcnt({4*(NS-2)})\ns_barrier")
        issue_a()
        a(f"s_sub_u32 s64, s64, 1\ns_cmp_lg_u32 s64, 0\ns_cbranch_scc1 {lbl}")
    aloop("L_a1", 8)
    a("s_barrier                ; B_H")
    aloop("L_a2", 11)
    a(f"s_add_u32 s63, s62, {FH_OFF}")
    a(f"s_waitcnt vmcnt({4*(NS-2)})\ns_barrier                ; P_20")
    P.stamp(7)
    poll_flags(a, "L_pollH", 2, 20, WS, 63, NON, 58)
    issue_a()
    aloop("L_a3", 15)
    for k in range(36, 44):
        a(f"s_waitcnt vmcnt({4*(43-k)})\ns_barrier")
    P.stamp(8)
    P.flush(9, 2, W, WS, 4, 0)
    a("s_endpgm")
    a("L_bloader:")
    SW2, SCR, SCI = 44, 48, 52
    srd(a, SW2, 24, 1792*512*2); srd(a, SCR, 14, 512*512*2); srd(a, SCI, 16, 512*512*2)
    VW, VC = 64, 72
    a("v_lshrrev_b32 v12, 3, v0\nv_and_b32 v13, 7, v0\nv_lshrrev_b32 v14, 4, v0")
    a("v_and_b32 v15, 1, v14\nv_lshlrev_b32 v15, 2, v15\nv_xor_b32 v15, v13, v15\nv_lshlrev_b32 v15, 4, v15")
    a("v_lshlrev_b32 v16, 10, v12\nv_add_u32 v16, v16, v15")
    for j in range(8): a(f"v_add_u32 v{VW+j}, {8192*j - 1024*(j&3)}, v16")
    for j in range(8):
        a(f"v_add_u32 v15, {4*j}, v14\nv_and_b32 v15, 7, v15\nv_xor_b32 v15, v13, v15\nv_lshlrev_b32 v15, 4, v15")
        a(f"v_lshlrev_b32 v16, 10, v12\nv_add_u32 v16, v16, v15\nv_add_u32 v{VC+j}, {8192*j - 1024*(j&3)}, v16")
    OBW, MS = 60, 61
    a(f"s_lshr_b32 s62, s{C}, 1               ; ct64")
    a(f"s_lshl_b32 s{OBW}, s62, 7             ; 128*ct64")
    a(f"s_mov_b32 s{MS}, 8192")
    def issue_bt(vbase, srd_, step):
        a(f"s_mov_b32 m0, s{MS}")
        a(f"s_add_u32 s39, s{MS}, 4096")
        for j in range(4): a(f"buffer_load_dwordx4 v{vbase+j}, s[{srd_}:{srd_+3}], s{OBW} offen offset:{1024*j} lds")
        a("s_mov_b32 m0, s39")
        a(f"s_add_u32 s{MS}, s{MS}, 16384\ns_cmp_ge_u32 s{MS}, {NS*16384}\ns_cselect_b32 s38, {NS*16384}, 0\ns_sub_u32 s{MS}, s{MS}, s38")
        for j in range(4, 8): a(f"buffer_load_dwordx4 v{vbase+j}, s[{srd_}:{srd_+3}], s{OBW} offen offset:{1024*(j&3)} lds")
        if step: a(f"s_add_u32 s{OBW}, s{OBW}, {step}")
    BD = 7
    if opt('latepf', 0): a("s_barrier                ; B_E")
    for k in range(BD): issue_bt(VW, SW2, 65536)
    P.stamp(4)
    if not opt('latepf', 0): a("s_barrier                ; B_E")
    def bloop(lbl, n, body):
        a(f"s_mov_b32 s64, {n}\n{lbl}:")
        body()
        a(f"s_sub_u32 s64, s64, 1\ns_cmp_lg_u32 s64, 0\ns_cbranch_scc1 {lbl}")
    def bstep_w():
        a(f"s_waitcnt vmcnt({8*(BD-1)})\ns_barrier"); issue_bt(VW, SW2, 65536)
    bloop("L_b1", 9, bstep_w)
    P.stamp(5)
    a("s_barrier                ; B_H")
    bloop("L_b2", 12, bstep_w)
    a(f"s_lshl_b32 s{OBW}, s62, 16")
    def bstep_c2():
        a(f"s_waitcnt vmcnt({8*(BD-1)})\ns_barrier"); issue_bt(VC, SCR, 0)
        a(f"s_waitcnt vmcnt({8*(BD-1)})\ns_barrier"); issue_bt(VC, SCI, 128)
    bloop("L_b3", 8, bstep_c2)
    for k in range(37, 44):
        a(f"s_waitcnt vmcnt({8*(43-k)})\ns_barrier")
    P.stamp(6)
    P.flush(9, 2, W, WS, 4, 0)
    a("s_endpgm")
    a("L_helper:")
    param_compute(a, vLre, vLim, vldt, vlr, vli, 20)
    csquare(a, vl8r, vl8i, vlr, vli, 20); csquare(a, vl8r, vl8i, vl8r, vl8i, 20); csquare(a, vl8r, vl8i, vl8r, vl8i, 20)
    csquare(a, vl128r, vl128i, vl8r, vl8i, 20)
    for _ in range(3): csquare(a, vl128r, vl128i, vl128r, vl128i, 20)
    a("v_and_b32 v20, 31, v0\nv_lshlrev_b32 v21, 3, v20\nv_add_u32 v21, %d, v21      ; E lds addr\nv_lshlrev_b32 v20, 4, v20              ; S offset in slot" % E_LDS)
    P.stamp(4)
    a("s_barrier                ; B_E")
    VE = 128
    for s in range(16): a(f"ds_read_b64 {vr(VE+2*s,2)}, v21 offset:{256*s}")
    a("s_waitcnt lgkmcnt(0)")
    cur, nxt = (24, 25), (28, 29)
    a(f"v_mov_b32 v24, v{VE}\nv_mov_b32 v25, v{VE+1}")
    for s in range(1, 16):
        cfma_new(a, nxt[0], nxt[1], vl8r, vl8i, cur[0], cur[1], VE+2*s, VE+2*s+1)
        cur, nxt = nxt, cur
    assert cur == (28, 29)
    a(f"v_mov_b32 v30, s{NON}\nv_mov_b32 v31, s{NON}")
    a(f"s_lshl_b32 s38, s{R}, 13\ns_lshl_b32 s39, s{C}, 9\ns_add_u32 s38, s38, s39\ns_add_u32 s38, s38, {S_OFF}")
    a(f"buffer_store_dwordx4 v[28:31], v20, s[{WS}:{WS+3}], s38 offen sc1")
    P.stamp(5)
    VS = 160
    def s_loads():
        a(f"s_lshl_b32 s38, s{C}, 9\ns_add_u32 s38, s38, {S_OFF}")
        for j in range(15):
            a(f"buffer_load_dwordx4 {vr(VS+4*j,4)}, v20, s[{WS}:{WS+3}], s38 offen sc1")
            a("s_add_u32 s38, s38, 8192")
    for k in range(3): a(f"s_barrier                ; P_{k}")
    s_loads()
    for k in range(3, 6): a(f"s_barrier                ; P_{k}")
    a(f"s_mov_b32 s65, {SPIN}")
    a("L_scheck:")
    a("s_waitcnt vmcnt(0)")
    a("s_mov_b64 s[58:59], 0")
    for j in range(15):
        a(f"s_cmp_gt_u32 s{R}, {j}\ns_cbranch_scc0 L_schk_done")
        a(f"v_cmp_ne_u32 vcc, s{NON}, v{VS+4*j+2}\ns_or_b64 s[58:59], s[58:59], vcc")
    a("L_schk_done:")
    a("s_cmp_eq_u64 s[58:59], 0\ns_cbranch_scc1 L_sok")
    a("s_sub_u32 s65, s65, 1\ns_cmp_eq_u32 s65, 0\ns_cbranch_scc1 L_sok")
    a("s_sleep 2")
    s_loads()
    a("s_branch L_scheck")
    a("L_sok:")
    P.stamp(6)
    a("s_barrier                ; P_6")
    a("v_mov_b32 v24, 0\nv_mov_b32 v25, 0")
    for j in range(15):
        a(f"s_cmp_gt_u32 s{R}, {j}\ns_cbranch_scc0 L_hdone")
        cfma_new(a, 28, 29, vl128r, vl128i, 24, 25, VS+4*j, VS+4*j+1)
        a("v_mov_b32 v24, v28\nv_mov_b32 v25, v29")
    a("L_hdone:")
    a("s_barrier                ; P_7")
    cur, nxt = (24, 25), (28, 29)
    for s in range(16):
        a(f"ds_write_b64 v21, v[{cur[0]}:{cur[1]}] offset:{256*s}")
        if s < 15:
            cfma_new(a, nxt[0], nxt[1], vl8r, vl8i, cur[0], cur[1], VE+2*s, VE+2*s+1)
            cur, nxt = nxt, cur
    a("s_waitcnt lgkmcnt(0)")
    a("s_barrier                ; P_8")
    P.stamp(7)
    a("s_barrier                ; B_H")
    a("s_mov_b32 s64, 35\nL_hrest:\ns_barrier\ns_sub_u32 s64, s64, 1\ns_cmp_lg_u32 s64, 0\ns_cbranch_scc1 L_hrest")
    P.flush(9, 2, W, WS, 4, 0)
    a("s_endpgm")

    a("L_consumer:")
    SP = 44
    ACA, ACB = 16, 48
    F0, F1 = 104, 156
    VXA, VBA, VWA = 2, 4, 225
    VLAM, VKAP, VP = 208, 212, 216
    a("v_and_b32 v13, 15, v0                  ; j\nv_lshrrev_b32 v14, 4, v0               ; G")
    a(f"s_lshl_b32 s38, s{C}, 5\nv_add_u32 v15, s38, v13\nv_lshlrev_b32 v15, 1, v15")
    a("s_waitcnt lgkmcnt(0)")
    PT = F0
    for (p, off) in ((6, 0), (8, 1), (18, 2)):
        srd(a, SP, p, 1024)
        a(f"buffer_load_ushort v{PT+off}, v15, s[{SP}:{SP+3}], 0 offen")
        a(f"buffer_load_ushort v{PT+3+off}, v15, s[{SP}:{SP+3}], 0 offen offset:32")
    srd(a, SP, 22, 3584)
    a(f"s_mul_i32 s38, s{C}, 224\nv_lshlrev_b32 v15, 3, v14\nv_add_u32 v15, s38, v15")
    for fs in range(7): a(f"buffer_load_dwordx2 {vr(ACB+8*fs+4,2)}, v15, s[{SP}:{SP+3}], 0 offen offset:{32*fs}")
    srd(a, WS, 30, WS_BYTES)
    a(f"""
    v_lshrrev_b32 v15, 2, v13
    v_lshlrev_b32 v1, 3, v15
    v_and_b32 v12, 3, v13
    v_add_u32 v1, v1, v12
    s_lshl_b32 s38, s{W}, 5
    v_add_u32 v1, s38, v1
    v_lshlrev_b32 v1, 7, v1
    v_lshrrev_b32 v12, 1, v13
    v_and_b32 v12, 1, v12
    v_lshlrev_b32 v15, 1, v15
    v_or_b32 v12, v12, v15
    """)
    for kk in range(2):
        a(f"v_add_u32 v15, {4*kk}, v14\nv_xor_b32 v15, v15, v12\nv_lshlrev_b32 v15, 4, v15\nv_add_u32 v{VXA+kk}, v1, v15")
    a(f"v_lshlrev_b32 v1, 7, v13\nv_add_u32 v1, {BB}, v1\nv_lshrrev_b32 v12, 1, v13")
    for kk in range(2):
        a(f"v_add_u32 v15, {4*kk}, v14\nv_xor_b32 v15, v15, v12\nv_lshlrev_b32 v15, 4, v15\nv_add_u32 v{VBA+kk}, v1, v15")
    a(f"""
    v_lshrrev_b32 v15, 2, v13
    v_lshlrev_b32 v1, 3, v14
    v_add_u32 v1, v1, v15
    v_lshlrev_b32 v1, 8, v1
    v_add_u32 v1, {WBASE}, v1
    v_and_b32 v12, 1, v13
    v_lshlrev_b32 v12, 3, v12
    v_add_u32 v1, v1, v12
    v_and_b32 v12, 1, v14
    v_lshlrev_b32 v12, 2, v12
    v_or_b32 v12, v12, v15
    v_lshlrev_b32 v12, 1, v12
    v_lshrrev_b32 v15, 1, v13
    v_and_b32 v15, 1, v15
    """)
    for fs in range(7):
        a(f"v_add_u32 v{VWA+fs}, {2*fs}, v15\nv_xor_b32 v{VWA+fs}, v{VWA+fs}, v12\nv_lshlrev_b32 v{VWA+fs}, 4, v{VWA+fs}\nv_add_u32 v{VWA+fs}, v1, v{VWA+fs}")
    for i in range(32): a(f"v_mov_b32 v{ACA+i}, 0")
    a("s_waitcnt vmcnt(0)")
    for ch in range(2):
        param_compute(a, PT+3*ch, PT+3*ch+1, PT+3*ch+2, VLAM+2*ch, VLAM+2*ch+1, VP, (VKAP+2*ch, VKAP+2*ch+1))
    for fs in range(7):
        b = ACB + 8*fs
        a(f"v_lshlrev_b32 v{b}, 16, v{b+4}\nv_and_b32 v{b+1}, 0xffff0000, v{b+4}\nv_lshlrev_b32 v{b+2}, 16, v{b+5}\nv_and_b32 v{b+3}, 0xffff0000, v{b+5}")
        a(f"v_mov_b32 v{b+4}, v{b}\nv_mov_b32 v{b+5}, v{b+1}\nv_mov_b32 v{b+6}, v{b+2}\nv_mov_b32 v{b+7}, v{b+3}")
    P.stamp(1)
    def read_list(fset, slot, kk):
        L = []
        for mt in range(2): L.append((('x', mt), f"ds_read_b128 {vr(fset+4*mt,4)}, v{VXA+kk} offset:{XB + slot*16384 + mt*512}"))
        for fs in range(7):
            for h in range(2):
                L.append((('w', fs, h), f"ds_read_b64_tr_b16 {vr(fset+24+4*fs+2*h,2)}, v{VWA+fs} offset:{slot*16384 + kk*8192 + h*1024}"))
        for s in range(4): L.append((('b', s), f"ds_read_b128 {vr(fset+8+4*s,4)}, v{VBA+kk} offset:{slot*8192 + s*2048}"))
        return L
    def mfma_list(fset):
        L = []
        for fs in range(7):
            for mt in range(2):
                acc = ACB + 8*fs + 4*mt
                L.append(([('x', mt), ('w', fs, 1)], f"v_mfma_f32_16x16x32_bf16 {vr(acc,4)}, {vr(fset+24+4*fs,4)}, {vr(fset+4*mt,4)}, {vr(acc,4)}"))
        for s in range(4):
            for mt in range(2):
                acc = ACA + 16*mt + 4*s
                L.append(([('x', mt), ('b', s)], f"v_mfma_f32_16x16x32_bf16 {vr(acc,4)}, {vr(fset+4*mt,4)}, {vr(fset+8+4*s,4)}, {vr(acc,4)}"))
        return L
    def block(cur_set, pending, nxt_reads):
        mf = mfma_list(cur_set)
        nr = len(nxt_reads)
        per_gap = [0]*len(mf); k = 0; g = 0
        while k < nr:
            n = min(2 if g < 4 else 1, nr-k); per_gap[g] = n; k += n; g += 1
        issued = 0; done_upto = -1; ri = 0
        for gi, (deps, txt) in enumerate(mf):
            if pending:
                need = max(pending.index(d) for d in deps)
                if need > done_upto:
                    n = (len(pending) - 1 - need) + issued
                    a(f"s_waitcnt lgkmcnt({min(n,15)})"); done_upto = need
            a(txt)
            for _ in range(per_gap[gi]):
                a(nxt_reads[ri][1]); ri += 1; issued += 1
    a("s_barrier                ; B_0")
    P.stamp(2)
    r0 = read_list(F0, 0, 0)
    for _, t in r0: a(t)
    pending = [k for k, _ in r0]
    for i in range(8):
        s = i % 3
        block(F0, pending, read_list(F1, s, 1))
        a(f"s_waitcnt lgkmcnt(0)\ns_barrier                ; B_{i+1}")
        if i < 7:
            rn = read_list(F0, (i+1) % 3, 0)
            block(F1, None, rn)
            pending = [k for k, _ in rn]
        else:
            block(F1, None, [])
    P.stamp(3)
    a(f"v_mov_b32 v1, {NONCE_LDS}\nds_read_b32 v12, v1")
    a(f"s_mov_b32 s46, {LOG2E}\ns_mov_b32 s47, {LOG2E}")
    a(f"s_lshl_b32 s38, s{R}, 2\ns_add_u32 s38, s38, s{W}\ns_mul_i32 s49, s38, {KS}      ; (4r+m)*176")
    a(f"s_mul_i32 s39, s{C}, 7\ns_add_u32 s48, s49, s39\ns_lshl_b32 s48, s48, 10")
    a("v_lshlrev_b32 v15, 4, v0               ; lane*16")
    a(f"s_waitcnt lgkmcnt(0)\nv_readfirstlane_b32 s{NON}, v12")
    TM = F0
    for fs in range(7):
        b = ACB + 8*fs
        T_, E_, A_ = TM, TM+8, TM+16
        for p in range(4): a(f"v_pk_mul_f32 {vr(T_+2*p,2)}, {vr(b+2*p,2)}, s[46:47]")
        for p in range(8): a(f"v_exp_f32 v{E_+p}, v{T_+p}")
        for p in range(4): a(f"v_pk_add_f32 {vr(A_+2*p,2)}, {vr(E_+2*p,2)}, 2.0 op_sel_hi:[1,0]")
        for p in range(4): a(f"v_pk_fma_f32 {vr(A_+2*p,2)}, {vr(E_+2*p,2)}, {vr(A_+2*p,2)}, 2.0 op_sel_hi:[1,1,0]")
        for p in range(8): a(f"v_rcp_f32 v{T_+p}, v{A_+p}")
        for p in range(4): a(f"v_pk_fma_f32 {vr(T_+2*p,2)}, {vr(T_+2*p,2)}, -2.0, 1.0 op_sel_hi:[1,0,0]")
        for p in range(4): a(f"v_pk_mul_f32 {vr(T_+2*p,2)}, {vr(b+2*p,2)}, {vr(T_+2*p,2)}")
        O_ = TM + 24 + 4*(fs & 1)
        for p in range(4): a(f"v_cvt_pk_bf16_f32 v{O_+p}, v{T_+2*p}, v{T_+2*p+1}")
        a("s_nop 1")
        a(f"v_permlane16_swap_b32 v{O_}, v{O_+2}\nv_permlane16_swap_b32 v{O_+1}, v{O_+3}")
        a(f"buffer_store_dwordx4 {vr(O_,4)}, v15, s[{WS}:{WS+3}], s48 offen sc1")
        a("s_add_u32 s48, s48, 1024")
    P.stamp(4)
    def raw(sc, u, im): return ACA + 16*(u >> 2) + 4*(sc + 2*im) + (u & 3)
    for u in range(8):
        for sc in range(2):
            br, bi = raw(sc,u,0), raw(sc,u,1); kr, ki = VKAP+2*sc, VKAP+2*sc+1
            t = VP + 2*sc
            a(f"v_mul_f32 v{t}, v{kr}, v{br}\nv_mul_f32 v{t+1}, v{kr}, v{bi}")
            a(f"v_fma_f32 v{t}, -v{ki}, v{bi}, v{t}\nv_fma_f32 v{bi}, v{ki}, v{br}, v{t+1}\nv_mov_b32 v{br}, v{t}")
    VE = VP
    cur = [(raw(0,0,0), raw(0,0,1)), (raw(1,0,0), raw(1,0,1))]
    for u in range(1, 8):
        for sc in range(2):
            n = (VE + 4*sc + 2*(u & 1), VE + 4*sc + 2*(u & 1) + 1)
            cfma_new(a, n[0], n[1], VLAM+2*sc, VLAM+2*sc+1, cur[sc][0], cur[sc][1], raw(sc,u,0), raw(sc,u,1))
            cur[sc] = n
    VSEG = 11
    a(f"s_lshl_b32 s38, s{W}, 2\nv_add_u32 v1, s38, v14\nv_lshlrev_b32 v1, 8, v1\nv_lshlrev_b32 v12, 3, v13\nv_add_u32 v1, v1, v12\nv_add_u32 v{VSEG}, {E_LDS}, v1")
    a(f"ds_write_b64 v{VSEG}, v[{cur[0][0]}:{cur[0][1]}]\nds_write_b64 v{VSEG}, v[{cur[1][0]}:{cur[1][1]}] offset:128")
    a(f"s_lshl_b32 s38, s{R}, 2\ns_add_u32 s38, s38, s{W}\ns_lshl_b32 s50, s38, 6\ns_lshl_b32 s39, s{C}, 2\ns_add_u32 s50, s50, s39")
    a(f"v_mov_b32 v9, s{NON}\nv_mov_b32 v10, 0")
    a(f"s_add_u32 s51, s50, {FA_OFF}")
    a("s_waitcnt vmcnt(0)")
    a("s_mov_b64 s[52:53], exec\ns_mov_b64 exec, 1")
    a(f"buffer_store_dword v9, v10, s[{WS}:{WS+3}], s51 offen sc1")
    a("s_mov_b64 exec, s[52:53]")
    P.stamp(5)
    a("s_waitcnt lgkmcnt(0)\ns_barrier                ; B_E")
    ACC_B, ACC_A = 48, 64
    G0, G1 = 80, 112
    VX, VG, VD, VO = 144, 160, 176, 177
    VA0, VBW0, VBC0 = 178, 179, 180
    VA, VBW, VBC = 184, 185, 186
    SX2, SD, SO = 44, 56, 60
    srd(a, SX2, 4, 2048*512*2); srd(a, SD, 96, 1024); srd(a, SO, 98, 2048*512*4)
    a(f"s_lshr_b32 s35, s{W}, 1              ; a\ns_and_b32 s36, s{W}, 1              ; b")
    a(f"s_lshl_b32 s37, s35, 12\nv_add_u32 v{VA0}, s37, v15        ; lane*16 + 4096a")
    a(f"""
    v_lshrrev_b32 v1, 1, v14
    v_lshlrev_b32 v1, 3, v1
    v_lshrrev_b32 v12, 2, v13
    v_add_u32 v1, v1, v12
    v_lshlrev_b32 v1, 7, v1
    v_and_b32 v12, 1, v14
    v_lshlrev_b32 v12, 1, v12
    s_lshl_b32 s37, s36, 2
    v_add_u32 v12, s37, v12
    v_lshrrev_b32 v9, 1, v13
    v_and_b32 v9, 1, v9
    v_add_u32 v12, v12, v9
    v_lshrrev_b32 v9, 3, v13
    v_lshlrev_b32 v9, 2, v9
    v_xor_b32 v12, v12, v9
    v_lshlrev_b32 v12, 4, v12
    v_add_u32 v1, v1, v12
    v_and_b32 v12, 1, v13
    v_lshlrev_b32 v12, 3, v12
    v_add_u32 v1, v1, v12
    v_add_u32 v{VBW0}, 8192, v1
    """)
    a(f"""
    v_and_b32 v1, 31, v0
    s_lshl_b32 s37, s36, 5
    v_add_u32 v12, s37, v1
    v_lshlrev_b32 v12, 7, v12
    v_add_u32 v12, 8192, v12
    v_lshrrev_b32 v9, 1, v1
    v_and_b32 v9, 7, v9
    v_lshrrev_b32 v10, 5, v0
    """)
    for kk in range(4):
        a(f"v_add_u32 v8, {2*kk}, v10\nv_xor_b32 v8, v8, v9\nv_lshlrev_b32 v8, 4, v8\nv_add_u32 v{VBC0+kk}, v12, v8")
    a(f"s_lshl_b32 s38, s{R}, 7\ns_and_b32 s39, s{C}, 1\ns_lshl_b32 s39, s39, 6\ns_add_u32 s38, s38, s39\ns_lshl_b32 s39, s35, 5\ns_add_u32 s38, s38, s39      ; row0")
    a(f"s_lshr_b32 s39, s{C}, 1\ns_lshl_b32 s39, s39, 6\ns_lshl_b32 s37, s36, 5\ns_add_u32 s39, s39, s37      ; d0")
    a("v_add_u32 v4, s39, v1                 ; d\nv_lshlrev_b32 v5, 3, v10\nv_add_u32 v5, s38, v5      ; row0+8hh")
    a(f"v_lshlrev_b32 v6, 10, v5\nv_lshlrev_b32 v7, 1, v4\nv_add_u32 v6, v6, v7")
    for q in range(4):
        a(f"s_mov_b32 s67, {(16*(q&1)+4*(q>>1))*1024}")
        for r_ in range(4):
            a(f"buffer_load_ushort v{VX+4*q+r_}, v6, s[{SX2}:{SX2+3}], s67 offen offset:{r_*1024}")
    a(f"buffer_load_ushort v{VD}, v7, s[{SD}:{SD+3}], 0 offen")
    a(f"v_lshlrev_b32 v{VO}, 11, v5\nv_lshlrev_b32 v7, 2, v4\nv_add_u32 v{VO}, v{VO}, v7")
    VGA = 190
    a(f"v_lshlrev_b32 v{VGA}, 2, v5")
    for i in range(32): a(f"v_mov_b32 v{ACC_B+i}, 0")
    SL = 54
    a(f"s_mov_b32 s{SL}, 0")
    def set_addr(kind):
        a(f"v_add_u32 v{VA}, s{SL}, v{VA0}")
        if kind == 'w': a(f"v_add_u32 v{VBW}, s{SL}, v{VBW0}")
        else:
            for kk in range(4): a(f"v_add_u32 v{VBC+kk}, s{SL}, v{VBC0+kk}")
    def adv():
        a(f"s_add_u32 s{SL}, s{SL}, 16384\ns_cmp_ge_u32 s{SL}, {NS*16384}\ns_cselect_b32 s38, {NS*16384}, 0\ns_sub_u32 s{SL}, s{SL}, s38")
    def reads2(fs, kind):
        for kk in range(4):
            a(f"ds_read_b128 {vr(fs+4*kk,4)}, v{VA} offset:{1024*kk}")
            if kind == 'w':
                a(f"ds_read_b64_tr_b16 {vr(fs+16+4*kk,2)}, v{VBW} offset:{2048*kk}")
                a(f"ds_read_b64_tr_b16 {vr(fs+16+4*kk+2,2)}, v{VBW} offset:{2048*kk+512}")
            else:
                a(f"ds_read_b128 {vr(fs+16+4*kk,4)}, v{VBC+kk}")
    def mfmas2(fs, acc):
        for kk in range(4):
            a(f"v_mfma_f32_32x32x16_bf16 {vr(acc,16)}, {vr(fs+4*kk,4)}, {vr(fs+16+4*kk,4)}, {vr(acc,16)}")
    def step(cur, nxt, acc, kind):
        a("s_waitcnt lgkmcnt(0)\ns_barrier")
        adv(); set_addr(kind); reads2(nxt, kind); mfmas2(cur, acc)
    a("s_barrier                ; P_0")
    P.stamp(6)
    set_addr('w'); reads2(G0, 'w')
    a("s_mov_b32 s55, 0")
    a("L_c1:")
    step(G0, G1, ACC_B, 'w'); step(G1, G0, ACC_B, 'w')
    a("s_add_u32 s55, s55, 1")
    a("s_cmp_eq_u32 s55, 4\ns_cbranch_scc1 L_hookH")
    a("s_cmp_eq_u32 s55, 6\ns_cbranch_scc1 L_hookF")
    a("L_c1_cont:")
    a("s_cmp_lt_u32 s55, 13\ns_cbranch_scc1 L_c1")
    step(G0, G1, ACC_B, 'w')
    step(G1, G0, ACC_B, 'c')
    a(f"s_mov_b32 s66, {G_OFF}")
    for q in range(4):
        a(f"buffer_load_dwordx4 {vr(VG+4*q,4)}, v{VGA}, s[{WS}:{WS+3}], s66 offen offset:{(16*(q&1)+4*(q>>1))*4} sc1")
    a("s_mov_b32 s55, 7")
    a("L_c2:")
    step(G0, G1, ACC_A, 'c'); step(G1, G0, ACC_A, 'c')
    a("s_sub_u32 s55, s55, 1\ns_cmp_lg_u32 s55, 0\ns_cbranch_scc1 L_c2")
    step(G0, G1, ACC_A, 'c')
    a("s_waitcnt lgkmcnt(0)")
    mfmas2(G1, ACC_A)
    P.stamp(8)
    a("s_waitcnt vmcnt(0)")
    a(f"v_lshlrev_b32 v{VD}, 16, v{VD}")
    for i in range(16): a(f"v_lshlrev_b32 v{VX+i}, 16, v{VX+i}")
    a("s_nop 7")
    for r_ in range(16):
        a(f"v_fma_f32 v{ACC_A+r_}, v{VX+r_}, v{VD}, v{ACC_A+r_}")
        a(f"v_sub_f32 v{ACC_A+r_}, v{ACC_A+r_}, v{ACC_B+r_}")
        a(f"v_fma_f32 v{ACC_A+r_}, v{VG+r_}, v{ACC_A+r_}, v{ACC_B+r_}")
    for r_ in range(16):
        t = 16*((r_ >> 2) & 1) + 4*(r_ >> 3) + (r_ & 3)
        if (r_ & 1) == 0: a(f"s_mov_b32 s67, {t*2048}")
        a(f"buffer_store_dword v{ACC_A+r_}, v{VO}, s[{SO}:{SO+3}], s67 offen offset:{(r_&1)*2048}")
    P.stamp(9)
    P.flush(10, 2, W, WS, 4, 0)
    a("s_endpgm")
    a("L_hookH:")
    a("s_barrier                ; B_H")
    HT = 192
    a(f"ds_read_b64 {vr(HT,2)}, v{VSEG}\nds_read_b64 {vr(HT+2,2)}, v{VSEG} offset:128")
    a(f"s_mul_i32 s38, s{W}, {TR_WAVE}\ns_add_u32 s38, s38, {TR_LDS}")
    a(f"v_mul_u32_u24 v8, {TR_STRIDE}, v13\nv_lshlrev_b32 v9, 3, v14\nv_add_u32 v8, v8, v9\nv_add_u32 v8, s38, v8")
    a(f"""
    v_lshrrev_b32 v9, 5, v0
    v_lshlrev_b32 v9, 3, v9
    v_lshrrev_b32 v10, 2, v13
    v_add_u32 v9, v9, v10
    v_mul_u32_u24 v9, {TR_STRIDE}, v9
    v_and_b32 v10, 1, v14
    v_lshlrev_b32 v10, 5, v10
    v_add_u32 v9, v9, v10
    v_and_b32 v10, 3, v13
    v_lshlrev_b32 v10, 3, v10
    v_add_u32 v9, v9, v10
    v_add_u32 v9, s38, v9
    """)
    a("s_waitcnt lgkmcnt(0)")
    prev = [(HT, HT+1), (HT+2, HT+3)]
    for u in range(8):
        for sc in range(2):
            br, bi = raw(sc,u,0), raw(sc,u,1); lr, li = VLAM+2*sc, VLAM+2*sc+1; hr, hi = prev[sc]
            a(f"v_fma_f32 v{br}, v{lr}, v{hr}, v{br}\nv_fma_f32 v{bi}, v{lr}, v{hi}, v{bi}")
            a(f"v_fma_f32 v{br}, -v{li}, v{hi}, v{br}\nv_fma_f32 v{bi}, v{li}, v{hr}, v{bi}")
            prev[sc] = (br, bi)
    a(f"s_lshr_b32 s38, s{C}, 1\ns_lshl_b32 s38, s38, 3\ns_and_b32 s39, s{C}, 1\ns_lshl_b32 s39, s39, 1\ns_add_u32 s38, s38, s39\ns_add_u32 s38, s38, 112\ns_add_u32 s48, s49, s38\ns_lshl_b32 s48, s48, 10")
    for part in range(2):
        neg = "-" if part else ""
        for sc in range(2):
            for mt in range(2):
                src = ACA + 16*mt + 4*(sc + 2*part); d = HT + 2*(2*sc+mt)
                a(f"v_cvt_pk_bf16_f32 v{d}, {neg}v{src}, {neg}v{src+1}\nv_cvt_pk_bf16_f32 v{d+1}, {neg}v{src+2}, {neg}v{src+3}")
                a(f"ds_write_b64 v8, {vr(d,2)} offset:{sc*16*TR_STRIDE + 32*mt}")
        a("s_waitcnt lgkmcnt(0)")
        for sc in range(2):
            for h in range(2):
                a(f"ds_read_b64_tr_b16 {vr(HT+8+4*sc+2*h,2)}, v9 offset:{sc*16*TR_STRIDE + h*4*TR_STRIDE}")
        a("s_waitcnt lgkmcnt(0)")
        for sc in range(2):
            a(f"buffer_store_dwordx4 {vr(HT+8+4*sc,4)}, v15, s[{WS}:{WS+3}], s48 offen offset:{1024*sc} sc1")
        if part == 0: a("s_add_u32 s48, s48, 4096\ns_nop 1")
    P.stamp(7)
    a("s_branch L_c1_cont")
    a("L_hookF:")
    a(f"s_add_u32 s51, s50, {FH_OFF}\nv_mov_b32 v9, s{NON}\nv_mov_b32 v10, 0")
    a("s_waitcnt vmcnt(0)")
    a("s_mov_b64 s[52:53], exec\ns_mov_b64 exec, 1")
    a(f"buffer_store_dword v9, v10, s[{WS}:{WS+3}], s51 offen sc1")
    a("s_mov_b64 exec, s[52:53]")
    a("s_branch L_c1_cont")
    a("L_end:\ns_endpgm")
    return dict(vgpr=232, sgpr=102)

def kd(name, vgpr, sgpr):
    v = (vgpr + 7)//8*8
    return f""".p2align 6
.amdhsa_kernel {name}
  .amdhsa_next_free_vgpr {v}
  .amdhsa_next_free_sgpr {sgpr}
  .amdhsa_accum_offset {v}
  .amdhsa_group_segment_fixed_size 0
  .amdhsa_kernarg_size 136
  .amdhsa_user_sgpr_count 2
  .amdhsa_user_sgpr_kernarg_segment_ptr 1
  .amdhsa_system_sgpr_workgroup_id_x 1
  .amdhsa_float_denorm_mode_32 3
.end_amdhsa_kernel
"""

def header():
    ref = open("cdna_kernels/" + NAME + ".s.ref").read().split("\n")
    out = []
    for l in ref:
        if l.startswith("; @launch") or l.startswith("; Override"): break
        out.append(l)
    return "\n".join(out) + "\n"

def build():
    a = Asm()
    k = NAME + "_kernel"
    hdr = header() + "; @launch grid=(256,1,1) block=(512,1,1) lds=163840\n"
    a('.amdgcn_target "amdgcn-amd-amdhsa--gfx950"\n.text')
    a(f".globl {k}"); i = gen(a, k)
    return hdr + a.text() + '.section .rodata,"a"\n' + kd(k, **i)

if __name__ == "__main__":
    if "--prof" in sys.argv: PROFILE = True
    if "--dbgprof" in sys.argv: DBGPROF = True
    out = [x for x in sys.argv[1:] if not x.startswith("--")]
    path = out[0] if out else "cdna_kernels/" + NAME + ".s"
    txt = build()
    for p in lint_srd(txt): print("SRD-CLOBBER?", p)
    open(path, "w").write(txt)
    print("wrote", path)
```
